```python
import torch

def _softmax(x, axis=-1):
    return torch.softmax(x, dim=axis)
def _gelu(x):
    return torch.nn.functional.gelu(x, approximate="tanh")
def _silu(x):
    return torch.nn.functional.silu(x)
def _sigmoid(x):
    return torch.sigmoid(x)
def _layernorm(x, axis=-1, eps=1e-5):
    m = x.mean(dim=axis, keepdim=True)
    v = x.var(dim=axis, keepdim=True, unbiased=False)
    return (x - m) / torch.sqrt(v + eps)
def _scatter_add(tgt, idx, src, axis=0):
    return tgt.clone().index_add_(axis, idx, src)
def _segment_sum(src, seg, n):
    out = torch.zeros((n,) + src.shape[1:], dtype=src.dtype)
    return out.index_add_(0, seg, src)
def _pad(x, pw):
    flat = tuple(v for pair in reversed(pw) for v in pair)
    return torch.nn.functional.pad(x, flat)

kernel_name = 'sequential_preLN__compressed_kv_cla__geglu_ffn__decode'

def setup_inputs():

    _w = (lambda a: (lambda t: t.to(torch.bfloat16) if t.is_floating_point() else t)(torch.as_tensor(a)))
    def _A_setup():
        B, H, Sq, Sk, D, M = 4, 32, 1, 4096, 128, 512
        Dc = 4 * D
        return {
            "x": _w((lambda *s: torch.randn(*s, dtype=torch.bfloat16) * 0.05)(B, Sq, M)),
            "c_kv": _w((lambda *s: torch.randn(*s, dtype=torch.bfloat16) * 0.4)(B, Sk, Dc)),
            "w_q": _w((lambda *s: torch.randn(*s, dtype=torch.bfloat16) * 3.2)(M, H, D) * (M ** -0.5)),
            "w_uk": _w((lambda *s: torch.randn(*s, dtype=torch.bfloat16) * 3.2)(Dc, H, D) * (Dc ** -0.5)),
            "w_uv": _w((lambda *s: torch.randn(*s, dtype=torch.bfloat16) * 0.4)(Dc, H, D) * (Dc ** -0.5)),
            "w_o": _w((lambda *s: torch.randn(*s, dtype=torch.bfloat16) * 0.4)(H, D, M) * ((H * D) ** -0.5)),
        }
    _A_in = _A_setup()

    def _B_setup():
        B, S, D, F = 4, 1, 512, 1792
        return {
            "x": _w((lambda *s: torch.randn(*s, dtype=torch.bfloat16) * 0.05)(B, S, D)),
            "w_gate": _w((lambda *s: torch.randn(*s, dtype=torch.bfloat16) * 0.05)(D, F)),
            "w_up": _w((lambda *s: torch.randn(*s, dtype=torch.bfloat16) * 0.05)(D, F)),
            "w_down": _w((lambda *s: torch.randn(*s, dtype=torch.bfloat16) * 0.05)(F, D)),
        }
    _B_in = _B_setup()

    return {
        "A_x": _A_in["x"],
        "A_c_kv": _A_in["c_kv"],
        "A_w_q": _A_in["w_q"],
        "A_w_uk": _A_in["w_uk"],
        "A_w_uv": _A_in["w_uv"],
        "A_w_o": _A_in["w_o"],
        "B_x": _B_in["x"],
        "B_w_gate": _B_in["w_gate"],
        "B_w_up": _B_in["w_up"],
        "B_w_down": _B_in["w_down"],
    }

def reference(A_x, A_c_kv, A_w_q, A_w_uk, A_w_uv, A_w_o, B_x, B_w_gate, B_w_up, B_w_down):
    def _A_ref(x, c_kv, w_q, w_uk, w_uv, w_o):
        B, Sq, M = x.shape[0], x.shape[1], x.shape[2]
        Sk = c_kv.shape[1]
        H, D = w_q.shape[1], w_q.shape[2]
        q = torch.einsum("bqm,mhd->bhqd", x, w_q)
        k = torch.einsum("bkc,chd->bhkd", c_kv, w_uk)
        v = torch.einsum("bkc,chd->bhkd", c_kv, w_uv)
        scores = torch.einsum("bhqd,bhkd->bhqk", q, k) * (D ** -0.5)
        off = Sk - Sq
        qi = torch.arange(Sq)[:, None]
        kj = torch.arange(Sk)[None, :]
        cmask = kj <= (qi + off)
        scores = torch.where(cmask[None, None], scores, -1e9)
        p = _softmax(scores, axis=-1)
        ctx = torch.einsum("bhqk,bhkd->bhqd", p, v)
        return torch.einsum("bhqd,hdm->bqm", ctx, w_o)

    def _B_ref(x, w_gate, w_up, w_down):
        return (_gelu(x @ w_gate) * (x @ w_up)) @ w_down

    x = A_x
    h = x + _A_ref(_layernorm(x, axis=-1), A_c_kv, A_w_q, A_w_uk, A_w_uv, A_w_o)
    h2 = h + _B_ref(_layernorm(h, axis=-1), B_w_gate, B_w_up, B_w_down)
    return h2
```

```python
KNAME = "sequential_preLN__compressed_kv_cla__geglu_ffn__decode_kernel"
ARG = dict(x=0, ckv=8, wq=16, wuk=24, wuv=32, wo=40, bx=48, wg=56, wu=64, wd=72, out=80, dbg=88, ws=96)
SIZE = dict(x=4096, ckv=16777216, wq=4194304, wuk=4194304, wuv=4194304, wo=4194304, bx=4096,
            wg=1835008, wu=1835008, wd=1835008, out=4096, dbg=256, ws=268435456)

class Asm:
    def __init__(self):
        self.lines = []
        self.nlab = 0
    def __call__(self, s):
        for l in s.strip("\n").split("\n"):
            self.lines.append("    " + l.strip())
    def raw(self, s):
        self.lines.append(s)
    def label(self, name):
        self.lines.append(name + ":")
    def newlabel(self, p="L"):
        self.nlab += 1
        return f"{p}_{self.nlab}"
    def srd(self, s, base, size):
        self(f"s_mov_b32 s{s}, s{base}\ns_and_b32 s{s+1}, s{base+1}, 0xffff\ns_mov_b32 s{s+2}, {size}\ns_mov_b32 s{s+3}, 0x20000")
    def text(self):
        return "\n".join(self.lines) + "\n"

def kernel_begin(a, name):
    a.raw(".text")
    a.raw(f".globl {name}")
    a.raw(".p2align 8")
    a.raw(f".type {name},@function")
    a.label(name)

def kernel_desc(name, vgpr, sgpr=102, accum=None):
    if accum is None:
        accum = (vgpr + 3) // 4 * 4
        accum = min(accum, 256)
    return f""".section .rodata,"a"
.p2align 6
.amdhsa_kernel {name}
  .amdhsa_next_free_vgpr {vgpr}
  .amdhsa_next_free_sgpr {sgpr}
  .amdhsa_accum_offset {accum}
  .amdhsa_group_segment_fixed_size 0
  .amdhsa_kernarg_size 104
  .amdhsa_user_sgpr_count 2
  .amdhsa_user_sgpr_kernarg_segment_ptr 1
  .amdhsa_system_sgpr_workgroup_id_x 1
  .amdhsa_float_denorm_mode_32 3
.end_amdhsa_kernel
"""
TARGET = '.amdgcn_target "amdgcn-amd-amdhsa--gfx950"\n'
```

```python
import re
TRANS = ("v_exp_f32","v_log_f32","v_rcp_f32","v_rsq_f32","v_sqrt_f32","v_sin_f32","v_cos_f32")
def regs(tok):
    tok = tok.strip().lstrip("-").replace("abs(", "").replace("|", "").rstrip(")")
    m = re.fullmatch(r"([vsa])(\d+)", tok)
    if m: return {(m.group(1), int(m.group(2)))}
    m = re.fullmatch(r"([vsa])\[(\d+):(\d+)\]", tok)
    if m: return {(m.group(1), i) for i in range(int(m.group(2)), int(m.group(3))+1)}
    if tok in ("vcc", "vcc_lo", "vcc_hi"): return {("s","vcc")}
    if tok == "exec": return {("s","exec")}
    if tok == "m0": return {("s","m0")}
    return set()
class I:
    def __init__(s, line):
        s.line = line
        t = line.split(";")[0].strip()
        s.label = t.endswith(":")
        s.dir = t.startswith(".") or t == ""
        s.mn = "" if (s.label or s.dir) else t.split()[0]
        rest = t[len(s.mn):].strip()
        ops = [o.strip() for o in re.split(r",(?![^\[]*\])", rest)] if rest else []
        s.mods = ""
        if ops:
            parts = ops[-1].split()
            if len(parts) > 1: ops[-1] = parts[0]; s.mods = " ".join(parts[1:])
        s.ops = ops
        mn = s.mn
        s.mfma = mn.startswith("v_mfma")
        s.valu = mn.startswith("v_") and not s.mfma
        s.trans = any(mn.startswith(x) for x in TRANS)
        s.dpp = "_dpp" in mn
        s.perml = mn.startswith("v_permlane")
        s.rdl = mn.startswith("v_readlane") or mn.startswith("v_readfirstlane")
        s.dot = mn.startswith("v_dot")
        s.vmem = mn.startswith("buffer_") or mn.startswith("global_")
        s.ds = mn.startswith("ds_")
        s.salu = mn.startswith("s_")
        s.dma = s.vmem and re.search(r"\blds\b", s.mods) is not None
        s.states = 0 if (s.label or s.dir) else 1
        if mn == "s_nop": s.states = int(ops[0], 0) + 1
        R = [regs(o) for o in ops]
        s.w = set(); s.r = set(); s.srcC = set(); s.srcAB = set(); s.stdata = set()
        if s.mfma:
            s.w = R[0]; s.srcAB = R[1] | R[2]; s.srcC = R[3]; s.r = s.srcAB | s.srcC
            s.passes = 4 if "16x16x32" in mn else 8
        elif s.valu:
            if s.perml: s.w = R[0] | R[1]; s.r = R[0] | R[1]
            elif mn.startswith("v_cmp"): s.w = R[0]; s.r = set().union(*R[1:])
            elif "_co_" in mn: s.w = R[0] | R[1]; s.r = set().union(*R[2:])
            else:
                s.w = R[0]; s.r = set().union(*R[1:]) if len(R) > 1 else set()
                if mn.startswith("v_fmac") or mn.startswith("v_dot2c") or mn.startswith("v_writelane") or s.dpp: s.r |= R[0]
                if mn.startswith("v_cndmask") and len(ops) == 3: s.r |= {("s","vcc")}
        elif s.vmem:
            if "store" in mn or "atomic" in mn:
                s.r = set().union(*R)
                d = R[0] if mn.startswith("buffer_") else R[1]
                if "x4" in mn or "x3" in mn: s.stdata = d
                if "atomic" in mn and "sc0" in s.mods: s.w = R[0]
            elif s.dma: s.r = set().union(*R) | {("s","m0")}
            else: s.w = R[0]; s.r = set().union(*R[1:])
        elif s.ds:
            if mn.startswith("ds_read") or mn.startswith("ds_bpermute") or mn.startswith("ds_swizzle"): s.w = R[0]; s.r = set().union(*R[1:])
            else: s.r = set().union(*R)
        elif s.salu:
            if R and not mn.startswith("s_cmp") and not mn.startswith("s_cbranch") and not mn.startswith("s_waitcnt"):
                s.w = R[0]; s.r = set().union(*R[1:]) if len(R) > 1 else set()
                if "saveexec" in mn: s.w = s.w | {("s","exec")}
def V(x): return {r for r in x if r[0] in "va"}
def S(x): return {r for r in x if r[0] == "s"}
def need(p, c):
    n = 0
    if p.valu:
        vw = V(p.w); sw = S(p.w)
        if c.mfma and vw & c.r: n = max(n, 2)
        if c.dpp and vw & c.r: n = max(n, 2)
        if c.perml and vw & c.r: n = max(n, 2)
        if c.rdl and vw & c.r: n = max(n, 1)
        if sw:
            if (c.valu or c.mfma) and sw & c.r: n = max(n, 4 if (c.rdl or c.mn.startswith("v_writelane")) else 2)
            if c.vmem and sw & c.r: n = max(n, 5)
        if p.trans and c.valu and not c.trans and vw & c.r: n = max(n, 1)
        if p.trans and (c.vmem or c.ds) and vw & c.r: n = max(n, 1)
        if p.dot and vw & (c.r | c.w):
            if not (c.mn == p.mn and not (vw & (regs(c.ops[1]) | regs(c.ops[2])))): n = max(n, 3)
        if "dst_sel:WORD" in p.mods or "op_sel" in p.mods:
            if c.valu and vw & (c.r | c.w): n = max(n, 1)
    if p.mfma:
        big = p.passes == 8
        if c.mfma:
            if p.w & c.srcAB: n = max(n, 12 if big else 8)
            if p.w & c.srcC and not (p.w == c.srcC and p.passes == c.passes): n = max(n, 10 if big else 6)
            if p.w & c.w and not (p.w == c.srcC and p.passes == c.passes): n = max(n, 10 if big else 6)
        elif (c.valu or c.vmem or c.ds) and p.w & (c.r | c.w): n = max(n, 12 if big else 8)
        if c.valu and p.srcC & c.w: n = max(n, 7 if big else 3)
    if p.stdata and p.stdata & c.w: n = max(n, 2 if (c.valu or c.mfma) else 1)
    if p.salu and ("s","m0") in p.w and c.dma: n = max(n, 1)
    return n
def required(hist, c):
    d = 0; req = 0
    for p in reversed(hist):
        if d >= 14: break
        n = need(p, c)
        if n > d: req = max(req, n - d)
        d += p.states
    return req
def pad(lines, verbose=False):
    out = []; hist = []; added = 0
    for l in lines:
        c = I(l)
        if not (c.label or c.dir):
            r = required(hist, c)
            if r:
                nop = I(f"    s_nop {r-1}")
                out.append(nop); hist.append(nop); added += r
                if verbose: print("pad", r, "before", l.strip())
            hist.append(c)
            if c.mn in ("s_branch", "s_endpgm"): hist = []
        out.append(c)
    lab = {x.line.split(";")[0].strip()[:-1]: i for i, x in enumerate(out) if x.label}
    for i, x in enumerate(out):
        if x.mn == "s_branch" or x.mn.startswith("s_cbranch"):
            k = lab[x.ops[0]]
            tail = []
            for y in reversed(out[:i+1]):
                if y.label or y.dir: continue
                if y is not x and y.mn in ("s_branch", "s_endpgm"): break
                tail.insert(0, y)
                if len(tail) > 16: break
            h = list(tail); d = 0
            for y in out[k:]:
                if y.label or y.dir: continue
                if required(h, y):
                    raise RuntimeError(f"hazard across branch {x.line.strip()} -> {y.line.strip()}")
                h.append(y); d += y.states
                if d > 14 or y.mn in ("s_branch", "s_endpgm"): break
    return [x.line for x in out], added
```

```python
import sys, struct
from asmlib import *
import hz

def f2u(x): return struct.unpack("<I", struct.pack("<f", x))[0]

WS_EPOCH = 0
WS_FLAGS = 0x1000
WS_H1    = 0x10000
WS_H2    = 0x100000
WS_O     = 0x200000
WS_REC   = 0x600000
WS_H4    = 0x700000
WS_H5    = 0x780000
WS_STAMP = 0x800000
L_QA = 131072
MB = 147456
L_MAXX = MB; L_LS = MB+512; L_CK = MB+2560; L_PT = MB+4608; L_QS = MB+8704
L_BAD = MB+9792; L_VAL = MB+9808; L_RETRY = MB+9824; L_CS = MB+9856; L_CP = MB+10880
L_AP = 0; L_GP = 4096; L_HS = 8192; L_AS = 9216
LDS_BYTES = MB + 12928

S_X, S_CKV, S_WQ, S_WUK, S_WUV, S_WO, S_WGU, S_WD, S_OUT, S_WS = 4, 8, 12, 16, 20, 24, 28, 32, 36, 40
S_PG, S_PU, S_DBG = 44, 46, 48
sW, sH, sJ, sTAG = 52, 53, 54, 55
sPLO, sPHI = 56, 57
sT0, sT1, sT2, sT3 = 58, 59, 60, 61
sM = 62
sCNT = 70
sB3, sB45, sFS = 71, 72, 73
sEX = 74
sC = 76
sK0, sK1, sK2, sK3 = 77, 78, 79, 80
sST = 82
SPIN = 200000

class Cfg:
    nt = " nt"
    sround = True
    stamps = False
    prefetch45 = True
    codepf = True
    b0 = True

def gen(cfg=Cfg):
    a = Asm()
    nt = cfg.nt
    vL, vI, vS = 1, 2, 3
    def stamp(name):
        if cfg.stamps and name in cfg.stamps:
            k = cfg.stamps.index(name)
            a(f"s_memrealtime s[{sST+2*k}:{sST+2*k+1}]")
    def srd_tail(s, size): a(f"s_mov_b32 s{s+2}, {size}\ns_mov_b32 s{s+3}, 0x20000")
    def q(r): return f"v[{r}:{r+3}]"
    def d(r): return f"v[{r}:{r+1}]"
    def transpose(src, dst):
        for dw in range(4):
            for k2 in range(4):
                r0 = src + 4*(2*k2) + dw; r1 = src + 4*(2*k2+1) + dw
                a(f"v_perm_b32 v{dst+4*(2*dw)+k2}, v{r1}, v{r0}, s{sPLO}")
                a(f"v_perm_b32 v{dst+4*(2*dw+1)+k2}, v{r1}, v{r0}, s{sPHI}")
    def mfma(dst, A, B, C):
        c = q(C) if isinstance(C, int) else C
        a(f"v_mfma_f32_16x16x32_bf16 {q(dst)}, {q(A)}, {q(B)}, {c}")
    def swapred(op, regs, tmps, which):
        for r, t in zip(regs, tmps): a(f"v_mov_b32 v{t}, v{r}")
        for r, t in zip(regs, tmps): a(f"v_permlane{which}_swap_b32 v{r}, v{t}")
        for r, t in zip(regs, tmps): a(f"{op} v{r}, v{r}, v{t}")
    def dpp(op, dst, src, other, ctl, bank="0xf"):
        a(f"{op}_dpp v{dst}, v{src}, v{other} {ctl} row_mask:0xf bank_mask:{bank}")
    def bfround(dst, src):
        a(f"v_cvt_pk_bf16_f32 v{dst}, v{src}, v{src}\nv_and_b32 v{dst}, 0xffff0000, v{dst}")
    def ln_stats(vs, vq, t0):
        a(f"v_mul_f32 v{vs}, {f2u(1.0/512)}, v{vs}")
        a(f"v_mul_f32 v{vq}, {f2u(1.0/512)}, v{vq}")
        a(f"v_fma_f32 v{vq}, -v{vs}, v{vs}, v{vq}")
        a(f"v_max_f32 v{vq}, 0, v{vq}")
        bfround(vs, vs); bfround(vq, vq)
        a(f"v_add_f32 v{vq}, {f2u(1e-5)}, v{vq}")
        bfround(vq, vq)
        a(f"v_sqrt_f32 v{vq}, v{vq}")
        bfround(vq, vq)
        a(f"v_rcp_f32 v{vq}, v{vq}")
    def ln_apply(src, n, vs, vq, t0):
        for k in range(n): a(f"v_lshlrev_b32 v{t0+2*k}, 16, v{src+k}\nv_and_b32 v{t0+2*k+1}, 0xffff0000, v{src+k}")
        for k in range(2*n): a(f"v_sub_f32 v{t0+k}, v{t0+k}, v{vs}")
        for k in range(n): a(f"v_cvt_pk_bf16_f32 v{src+k}, v{t0+2*k}, v{t0+2*k+1}")
        for k in range(n): a(f"v_lshlrev_b32 v{t0+2*k}, 16, v{src+k}\nv_and_b32 v{t0+2*k+1}, 0xffff0000, v{src+k}")
        for k in range(2*n): a(f"v_mul_f32 v{t0+k}, v{t0+k}, v{vq}")
        for k in range(n): a(f"v_cvt_pk_bf16_f32 v{src+k}, v{t0+2*k}, v{t0+2*k+1}")
    def spin_check(lbl_retry, code):
        l = a.newlabel("L_sp")
        a(f"s_add_u32 s{sCNT}, s{sCNT}, 1\ns_cmp_lt_u32 s{sCNT}, {SPIN}\ns_cbranch_scc1 {lbl_retry}")
        a(f"v_mov_b32 v4, {code}\nv_mov_b32 v5, 0\nbuffer_store_dword v4, v5, s[{S_DBG}:{S_DBG+3}], 0 offen offset:{4*code}")
    def make_tag():
        a("s_waitcnt lgkmcnt(0)")
        a(f"s_mul_i32 s{sTAG}, s{sTAG}, 0x9E3779B1\ns_add_u32 s{sTAG}, s{sTAG}, 0x7F4A7C15")
    def ckv_issue():
        a(f"s_and_b32 s{sT0}, s2, 127\ns_lshl_b32 s{sT0}, s{sT0}, 17\ns_lshl_b32 s{sT1}, s{sW}, 14\ns_add_u32 s{sT0}, s{sT0}, s{sT1}")
        a(f"v_lshlrev_b32 v4, 4, v{vL}")
        for r in range(16):
            a(f"s_add_u32 m0, s{sT1}, {r*1024}")
            a(f"v_xor_b32 v{5+(r&1)}, {r<<4}, v4")
            a(f"buffer_load_dwordx4 v{5+(r&1)}, s[{S_CKV}:{S_CKV+3}], s{sT0} offen{nt} lds")
            a(f"s_add_u32 s{sT0}, s{sT0}, 1024")

    kernel_begin(a, KNAME)
    a.label("L_code0")
    stamp("start")
    a("s_cmp_ge_u32 s2, 256\ns_cbranch_scc1 L_end")
    for s, n in ((S_X,'x'),(S_WQ,'wq'),(S_WS,'ws'),(S_WUK,'wuk'),(S_CKV,'ckv'),(S_WUV,'wuv'),(S_WO,'wo'),(S_WD,'wd'),(S_OUT,'out'),(S_PG,'wg'),(S_PU,'wu'),(S_DBG,'dbg')):
        a(f"s_load_dwordx2 s[{s}:{s+1}], s[0:1], {ARG[n]}")
    a(f"v_lshrrev_b32 v4, 6, v0\nv_and_b32 v{vL}, 63, v0")
    a(f"v_readfirstlane_b32 s{sW}, v4")
    a(f"v_and_b32 v{vI}, 15, v0\nv_bfe_u32 v{vS}, v0, 4, 2")
    for s, n in ((S_X,'x'),(S_WQ,'wq'),(S_WS,'ws'),(S_WUK,'wuk'),(S_CKV,'ckv'),(S_WUV,'wuv'),(S_WO,'wo'),(S_WD,'wd'),(S_OUT,'out'),(S_WGU,'wg'),(S_DBG,'dbg')):
        srd_tail(s, SIZE[n])
    a(f"s_and_b32 s{sH}, s2, 7\ns_lshr_b32 s{sT0}, s2, 6\ns_lshl_b32 s{sT0}, s{sT0}, 3\ns_or_b32 s{sH}, s{sH}, s{sT0}")
    a(f"s_bfe_u32 s{sJ}, s2, 0x30003")
    a(f"s_mov_b32 s{sPLO}, 0x05040100\ns_mov_b32 s{sPHI}, 0x07060302")
    a(f"s_bfe_u32 s{sB3}, s2, 0x20005")
    a(f"s_and_b32 s{sB45}, s{sJ}, 3")
    a(f"s_lshr_b32 s{sT0}, s{sJ}, 2\ns_lshl_b32 s{sFS}, s{sH}, 1\ns_add_u32 s{sFS}, s{sFS}, s{sT0}")
    for g in range(4):
        m = 0x000F000F << (4*g)
        a(f"s_mov_b32 s{sM+2*g}, {m:#x}\ns_mov_b32 s{sM+2*g+1}, {m:#x}")
    a(f"s_mov_b32 s{sCNT}, 0")
    if cfg.stamps:
        for k in range(1, 10): a(f"s_mov_b32 s{sST+2*k}, 0")
    a("s_waitcnt lgkmcnt(0)")
    stamp("karg")
    a(f"s_load_dword s{sTAG}, s[{S_WS}:{S_WS+1}], {WS_EPOCH}")
    a(f"s_bitcmp1_b32 s{sW}, 0\ns_cselect_b32 s{S_WGU}, s{S_PU}, s{S_PG}\ns_cselect_b32 s{S_WGU+1}, s{S_PU+1}, s{S_PG+1}")
    a(f"s_cmp_lg_u32 s{sW}, 0\ns_cbranch_scc1 L_not0")

    a(f"v_and_b32 v4, 3, v{vL}\nv_lshlrev_b32 v4, 10, v4")
    a(f"v_lshrrev_b32 v5, 2, v{vL}\nv_lshl_add_u32 v5, v5, 6, v4")
    a(f"v_lshl_add_u32 v4, v{vS}, 4, v4")
    a(f"s_lshl_b32 s{sT0}, s{sJ}, 7")
    for k in range(4): a(f"buffer_load_dwordx4 {q(8+4*k)}, v5, s[{S_X}:{S_X+3}], 0 offen offset:{16*k}")
    for k in range(2): a(f"buffer_load_dwordx4 {q(24+4*k)}, v4, s[{S_X}:{S_X+3}], s{sT0} offen offset:{64*k}")
    a(f"v_lshlrev_b32 v6, 16, v{vS}\nv_lshl_add_u32 v6, v{vI}, 4, v6")
    a(f"s_lshl_b32 s{sT0}, s{sJ}, 19\ns_lshl_b32 s{sT1}, s{sH}, 8\ns_add_u32 s{sT0}, s{sT0}, s{sT1}")
    for ks in range(2):
        for r in range(8):
            a(f"s_add_u32 s{sT1}, s{sT0}, {(32*ks+r)*8192}")
            a(f"buffer_load_dwordx4 {q(64+32*ks+4*r)}, v6, s[{S_WQ}:{S_WQ+3}], s{sT1} offen{nt}")
    a(f"s_mov_b32 s{sK0}, 0x3f803f80")
    a("v_mov_b32 v32, 0\nv_mov_b32 v33, 0")
    stamp("w0_iss")
    if cfg.b0: a("s_barrier")
    a("s_waitcnt vmcnt(18)")
    stamp("w0_x")
    for k in range(16):
        a(f"v_dot2_f32_bf16 v32, v{8+k}, s{sK0}, v32\nv_dot2_f32_bf16 v33, v{8+k}, v{8+k}, v33")
    for c in ("row_ror:4", "row_ror:8"):
        dpp("v_add_f32", 32, 32, 32, c); dpp("v_add_f32", 33, 33, 33, c)
    swapred("v_add_f32", (32, 33), (34, 35), 16)
    swapred("v_add_f32", (32, 33), (34, 35), 32)
    ln_stats(32, 33, 34)
    a("s_waitcnt vmcnt(16)")
    ln_apply(24, 8, 32, 33, 8)
    for g in range(4):
        for k in range(8):
            a(f"v_cndmask_b32 v{32+8*g+k}, 0, v{24+k}, s[{sM+2*g}:{sM+2*g+1}]")
    stamp("w0_ln")
    a(f"s_mov_b32 s{sK0}, 0x05030201\ns_mov_b32 s{sK1}, 0x06050302\ns_mov_b32 s{sK2}, 0x07060503")
    a(f"s_lshl_b32 s{sT0}, s{sH}, 3\ns_add_u32 s{sT0}, s{sT0}, s{sJ}\ns_lshl_b32 s{sT0}, s{sT0}, 11\ns_add_u32 s{sT0}, s{sT0}, {WS_H1}")
    a(f"v_lshlrev_b32 v4, 4, v{vL}")
    make_tag()
    a(f"v_mov_b32 v19, s{sTAG}\nv_mov_b32 v23, s{sTAG}")
    for ks in range(2):
        a(f"s_waitcnt vmcnt({8-8*ks})")
        if ks == 1: stamp("w0_wq")
        dst = 128 if ks == 0 else 64
        transpose(64+32*ks, dst)
        for g in range(4):
            for t in range(2):
                mfma(8+4*t, 32+8*g+4*ks, dst+4*(4*t+g), "0" if (ks == 0 and g == 0) else 8+4*t)
    for t in range(2):
        r = 8+4*t; o = 16+4*t
        a(f"v_perm_b32 v{o}, v{r+1}, v{r}, s{sK0}\nv_perm_b32 v{o+1}, v{r+2}, v{r+1}, s{sK1}\nv_perm_b32 v{o+2}, v{r+3}, v{r+2}, s{sK2}")
        a(f"buffer_store_dwordx4 {q(o)}, v4, s[{S_WS}:{S_WS+3}], s{sT0} offen offset:{1024*t} sc1")
    stamp("w0_pub")
    a("s_waitcnt vmcnt(0)")
    stamp("w0_drain")
    a("s_barrier\ns_barrier")
    ckv_issue()
    a("s_branch L_b3")

    a.label("L_not0")
    a(f"s_cmp_lg_u32 s{sW}, 1\ns_cbranch_scc1 L_not1")
    def qa_pub_addr():
        a(f"v_lshrrev_b32 v4, 2, v{vI}\nv_lshlrev_b32 v4, 1, v4\nv_lshrrev_b32 v5, 1, v{vS}\nv_add_u32 v4, v4, v5")
        a(f"s_lshl_b32 s{sT0}, s{sJ}, 3\ns_and_b32 s{sT1}, s{sH}, 15\ns_xor_b32 s{sT0}, s{sT0}, s{sT1}")
        a(f"v_xor_b32 v4, s{sT0}, v4\nv_lshlrev_b32 v4, 4, v4")
        a(f"v_and_b32 v5, 1, v{vS}\nv_lshl_add_u32 v4, v5, 3, v4")
        a(f"v_and_b32 v5, 3, v{vI}\nv_lshl_add_u32 v42, v5, 15, v4")
        a(f"v_lshlrev_b32 v43, 4, v{vL}")
        a(f"s_lshl_b32 s{sK3}, s{sH}, 10\ns_add_u32 s{sK3}, s{sK3}, {WS_H2}")
    qa_pub_addr()
    if cfg.b0: a("s_barrier")
    a(f"v_lshlrev_b32 v6, 13, v{vI}\nv_lshl_add_u32 v6, v{vS}, 4, v6")
    a(f"s_lshl_b32 s{sT0}, s{sJ}, 19\ns_lshl_b32 s{sT1}, s{sH}, 8\ns_add_u32 s{sT0}, s{sT0}, s{sT1}")
    for n_ in range(4):
        for ks in range(4):
            a(f"buffer_load_dwordx4 {q(64+16*n_+4*ks)}, v6, s[{S_WUK}:{S_WUK+3}], s{sT0} offen offset:{64*ks}{nt}")
        if n_ < 3: a(f"s_add_u32 s{sT0}, s{sT0}, {16*8192}")
    make_tag()
    a(f"v_lshlrev_b32 v44, 4, v{vI}\nv_lshl_add_u32 v44, v{vS}, 1, v44\nv_add_u32 v44, {L_QS}, v44")
    a(f"v_and_b32 v45, 3, v{vI}\nv_mul_u32_u24 v45, 272, v45\nv_lshl_add_u32 v45, v{vS}, 4, v45\nv_add_u32 v45, {L_QS}, v45")
    a(f"s_mov_b32 s{sK0}, 0x0504030c\ns_mov_b32 s{sK1}, 0x0403020c")
    a(f"s_lshl_b32 s{sT2}, s{sH}, 14\ns_add_u32 s{sT2}, s{sT2}, {WS_H1}")
    a("s_barrier")
    def h1_loads():
        for jj in range(8):
            a(f"s_add_u32 s{sT0}, s{sT2}, {jj*2048}")
            for t in range(2):
                a(f"buffer_load_dwordx4 {q(128+8*jj+4*t)}, v43, s[{S_WS}:{S_WS+3}], s{sT0} offen offset:{1024*t} sc1")
    h1_loads()
    def fl_load():
        a(f"s_mov_b32 s{sT1}, {WS_FLAGS}")
        a(f"buffer_load_dwordx4 {q(48)}, v43, s[{S_WS}:{S_WS+3}], s{sT1} offen sc1")
    def fl_cmp():
        a(f"v_xor_b32 v4, s{sTAG}, v48")
        for k in range(1, 4): a(f"v_bitop3_b32 v4, v{48+k}, s{sTAG}, v4 bitop3:0xbe")
        a("v_cmp_ne_u32 vcc, 0, v4")
    fl_load()
    a("s_barrier")
    a("s_branch L_h1chk")
    a.label("L_h1retry")
    a("s_sleep 1")
    h1_loads()
    a.label("L_h1chk")
    a("s_waitcnt vmcnt(0)")
    stamp("w1_h1")
    a(f"v_xor_b32 v4, s{sTAG}, v131")
    for k in range(1, 16): a(f"v_bitop3_b32 v4, v{131+4*k}, s{sTAG}, v4 bitop3:0xbe")
    a("v_cmp_ne_u32 vcc, 0, v4\ns_cbranch_vccz L_h1ok")
    spin_check("L_h1retry", 1)
    a.label("L_h1ok")
    for jj in range(8):
        for t in range(2):
            r = 128+8*jj+4*t
            if jj == 0:
                o = 8+4*t
                a(f"v_lshlrev_b32 v{o}, 8, v{r}\nv_perm_b32 v{o+1}, v{r+1}, v{r}, s{sK0}\nv_perm_b32 v{o+2}, v{r+2}, v{r+1}, s{sK1}\nv_and_b32 v{o+3}, 0xffffff00, v{r+2}")
            else:
                o = 16+4*t
                a(f"v_lshlrev_b32 v{o}, 8, v{r}\nv_perm_b32 v{o+1}, v{r+1}, v{r}, s{sK0}\nv_perm_b32 v{o+2}, v{r+2}, v{r+1}, s{sK1}\nv_and_b32 v{o+3}, 0xffffff00, v{r+2}")
                for b in range(4): a(f"v_add_f32 v{8+4*t+b}, v{8+4*t+b}, v{o+b}")
    for t in range(2):
        for bp in range(2):
            a(f"v_cvt_pk_bf16_f32 v{16+2*t+bp}, v{8+4*t+2*bp}, v{8+4*t+2*bp+1}")
    for t in range(2):
        for bp in range(2):
            a(f"ds_write_b16 v44, v{16+2*t+bp} offset:{272*(2*bp)+8*t}")
            a(f"ds_write_b16_d16_hi v44, v{16+2*t+bp} offset:{272*(2*bp+1)+8*t}")
    for ks in range(4): a(f"ds_read_b128 {q(8+4*ks)}, v45 offset:{64*ks}")
    for ks in range(4):
        a(f"s_waitcnt lgkmcnt({3-ks})")
        for n_ in range(4):
            mfma(24+4*n_, 64+16*n_+4*ks, 8+4*ks, "0" if ks == 0 else 24+4*n_)
    for n_ in range(4):
        a(f"s_mov_b64 exec, s[{sM+2*n_}:{sM+2*n_+1}]")
        a(f"v_cvt_pk_bf16_f32 v40, v{24+4*n_}, v{25+4*n_}\nv_cvt_pk_bf16_f32 v41, v{26+4*n_}, v{27+4*n_}")
    a("s_mov_b64 exec, -1")
    a(f"buffer_store_dwordx2 {d(40)}, v42, s[{S_WS}:{S_WS+3}], s{sK3} offen sc1")
    stamp("w1_qapub")
    fl_cmp()
    a("s_cbranch_vccz L_fl1")
    fl_load()
    a.label("L_fl1")
    ckv_issue()
    a("s_waitcnt vmcnt(16)")
    a.label("L_fl2")
    fl_cmp()
    a("s_cbranch_vccz L_fl3")
    a("s_sleep 1")
    fl_load()
    a("s_waitcnt vmcnt(0)")
    spin_check("L_fl2", 6)
    a.label("L_fl3")
    def qa_loads():
        a(f"s_lshl_b32 s{sT0}, s{sB3}, 15\ns_lshr_b32 s{sT1}, s2, 7\ns_lshl_b32 s{sT1}, s{sT1}, 14\ns_add_u32 s{sT0}, s{sT0}, s{sT1}\ns_add_u32 s{sT0}, s{sT0}, {WS_H2}")
        a(f"v_lshlrev_b32 v4, 4, v{vL}")
        for r in range(16):
            a(f"s_mov_b32 m0, {L_QA + r*1024}")
            a(f"s_add_u32 s{sT1}, s{sT0}, {r*1024}")
            a(f"buffer_load_dwordx4 v4, s[{S_WS}:{S_WS+3}], s{sT1} offen sc1 lds")
    qa_loads()
    a("s_branch L_b3")

    a.label("L_not1")
    a(f"s_cmp_ge_u32 s{sW}, 4\ns_cbranch_scc1 L_w47")
    if cfg.b0: a("s_barrier")
    ckv_issue()
    make_tag()
    a(f"v_mov_b32 v4, {L_BAD}\nv_mov_b32 v5, 0\nds_write_b32 v4, v5\ns_waitcnt lgkmcnt(0)")
    a("s_barrier\ns_barrier")
    a("s_branch L_b3")
    a.label("L_w47")
    a(f"s_cmp_lg_u32 s{sW}, 4\ns_cbranch_scc1 L_not4")
    a("v_mov_b32 v8, -1\nv_mov_b32 v9, -1\nv_mov_b32 v10, -1\nv_mov_b32 v11, -1")
    qa_pub_addr()
    if cfg.b0: a("s_barrier")
    a(f"buffer_store_dwordx2 {d(8)}, v42, s[{S_WS}:{S_WS+3}], s{sK3} offen sc1")
    a(f"s_lshl_b32 s{sT0}, s{sB45}, 6\ns_add_u32 s{sT0}, s{sT0}, s{sFS}\ns_lshl_b32 s{sT0}, s{sT0}, 10\ns_add_u32 s{sT1}, s{sT0}, {WS_H4}")
    a(f"buffer_store_dwordx4 {q(8)}, v43, s[{S_WS}:{S_WS+3}], s{sT1} offen sc1")
    a(f"s_add_u32 s{sT1}, s{sT0}, {WS_H5}")
    a(f"buffer_store_dwordx4 {q(8)}, v43, s[{S_WS}:{S_WS+3}], s{sT1} offen sc1")
    make_tag()
    a(f"v_mov_b32 v12, s{sTAG}\nv_mov_b32 v13, 0")
    a(f"s_lshl_b32 s{sT0}, s2, 2\ns_add_u32 s{sT0}, s{sT0}, {WS_FLAGS}")
    a("s_waitcnt vmcnt(0)")
    stamp("w4_rst")
    a("s_mov_b64 exec, 1")
    a(f"buffer_store_dword v12, v13, s[{S_WS}:{S_WS+3}], s{sT0} offen sc1")
    a("s_mov_b64 exec, -1")
    a("s_branch L_nopf")
    a.label("L_not4")
    if cfg.codepf:
        a(f"s_cmp_lg_u32 s{sW}, 7\ns_cbranch_scc1 L_nopf3")
        a(f"s_getpc_b64 s[{sEX}:{sEX+1}]")
        a.label("L_pc")
        a(f"s_sub_u32 s{sEX}, s{sEX}, L_pc-L_code0\ns_subb_u32 s{sEX+1}, s{sEX+1}, 0")
        a(f"s_lshr_b32 s{sT0}, s2, 3\ns_lshl_b32 s{sT0}, s{sT0}, 10")
        a(f"v_lshl_add_u32 v4, v{vL}, 7, s{sT0}")
        a(f"v_cmp_gt_u32 vcc, L_codeend-L_code0, v4")
        a(f"s_and_b64 exec, vcc, 0xff\ns_cbranch_execz L_nopf2")
        a(f"global_load_dword v63, v4, s[{sEX}:{sEX+1}]")
        a.label("L_nopf2")
        a("s_mov_b64 exec, -1")
    a.label("L_nopf3")
    if cfg.b0: a("s_barrier")
    make_tag()
    a.label("L_nopf")
    a("s_barrier\ns_barrier")
    ckv_issue()

    a.label("L_b3")
    if cfg.stamps: a(f"s_mov_b32 s81, s{sCNT}")
    a(f"s_mov_b32 s{sCNT}, 0")
    for kk in range(4):
        a(f"v_add_u32 v4, {4*kk}, v{vS}\nv_xor_b32 v4, v4, v{vI}\nv_lshlrev_b32 v4, 4, v4\nv_lshl_add_u32 v4, v{vI}, 10, v4")
        a(f"v_add_u32 v{20+kk}, {L_QA}, v4")
        a(f"v_lshl_add_u32 v{16+kk}, s{sW}, 14, v4")
    a(f"v_lshrrev_b32 v4, 2, v{vI}\nv_lshlrev_b32 v4, 1, v4\nv_lshl_add_u32 v4, v{vS}, 3, v4")
    a(f"v_bfe_u32 v5, v{vI}, 1, 1\nv_lshl_add_u32 v5, s{sW}, 3, v5")
    a(f"v_and_b32 v6, 15, v4\nv_xor_b32 v5, v5, v6\nv_lshlrev_b32 v5, 4, v5\nv_lshl_add_u32 v4, v4, 10, v5")
    a(f"v_and_b32 v5, 1, v{vI}\nv_lshl_add_u32 v4, v5, 3, v4")
    for t in range(4):
        for aa in range(2):
            a(f"v_xor_b32 v{24+2*t+aa}, {(((2*t)|aa)<<4) | (aa<<10)}, v4")
    a(f"v_lshlrev_b32 v33, 5, v{vI}\nv_add_u32 v33, {L_MAXX}, v33\nv_lshl_add_u32 v32, s{sW}, 2, v33")
    a(f"s_lshr_b32 s{sT0}, s{sW}, 1\ns_lshl_b32 s{sT0}, s{sT0}, 10\ns_and_b32 s{sT1}, s{sW}, 1\ns_lshl_b32 s{sT1}, s{sT1}, 9\ns_add_u32 s{sT0}, s{sT0}, s{sT1}\ns_add_u32 s{sT0}, s{sT0}, {L_PT}")
    a(f"v_lshrrev_b32 v4, 1, v{vS}\nv_lshlrev_b32 v4, 8, v4\nv_lshl_add_u32 v4, v{vI}, 4, v4\nv_and_b32 v5, 1, v{vS}\nv_lshl_add_u32 v4, v5, 2, v4\nv_add_u32 v34, s{sT0}, v4")
    a(f"v_lshlrev_b32 v35, 4, v{vL}\nv_add_u32 v35, {L_PT}, v35")
    a(f"v_lshlrev_b32 v4, 7, v{vI}\nv_lshl_add_u32 v4, v{vS}, 2, v4\nv_lshl_add_u32 v4, s{sW}, 4, v4\nv_add_u32 v36, {L_LS}, v4")
    a(f"v_lshlrev_b32 v4, 17, v{vI}\nv_lshl_add_u32 v4, v{vS}, 4, v4\nv_lshl_add_u32 v37, s{sW}, 7, v4")
    a(f"v_mov_b32 v38, {L_BAD}")
    import math
    cc = math.log2(math.e) if cfg.sround else math.log2(math.e) * 128 ** -0.5
    a(f"s_mov_b32 s{sC}, {f2u(cc)}")
    a(f"s_lshl_b32 s{sT0}, s{sB45}, 7")
    a(f"v_add_u32 v4, s{sT0}, v{vL}\nv_lshlrev_b32 v4, 13, v4\nv_lshl_add_u32 v39, s{sFS}, 7, v4")
    a(f"s_lshl_b32 s{sT0}, s{sFS}, 16\ns_lshl_b32 s{sT2}, s{sB45}, 14\ns_add_u32 s{sT0}, s{sT0}, s{sT2}")
    a(f"v_lshl_add_u32 v40, v{vL}, 7, s{sT0}")
    a(f"s_and_b32 s{sT0}, s{sW}, 6\ns_cmp_lg_u32 s{sT0}, 2\ns_cbranch_scc1 L_b3o")
    a("s_waitcnt vmcnt(0)")
    a("s_barrier")
    if cfg.prefetch45:
        a(f"s_and_b32 s{sT0}, s{sW}, 1\ns_lshl_b32 s{sT1}, s{sT0}, 19\ns_lshl_b32 s{sT0}, s{sT0}, 13")
        a(f"buffer_load_dword v41, v39, s[{S_WUV}:{S_WUV+3}], s{sT1} offen{nt}")
        a(f"buffer_load_dword v41, v40, s[{S_WO}:{S_WO+3}], s{sT0} offen{nt}")
    a("s_branch L_b3j")
    a.label("L_b3o")
    a("s_barrier")
    stamp("b3")
    a("s_waitcnt vmcnt(0)")
    a.label("L_b3j")
    stamp("ckv")
    for ks in range(16): a(f"ds_read_b128 {q(64+4*ks)}, v{16+(ks&3)} offset:{(ks>>2)*256}")
    a.label("L_nofl")
    a("s_waitcnt lgkmcnt(0)")
    a("s_barrier")
    stamp("b4")
    for ks in range(16): a(f"ds_read_b128 {q(128+4*ks)}, v{20+(ks&3)} offset:{(ks>>2)*256}")
    for ks in range(16):
        a(f"s_waitcnt lgkmcnt({15-ks})")
        mfma(8, 64+4*ks, 128+4*ks, "0" if ks == 0 else 8)
    trl = [(kk, t, aa) for kk in range(4) for t in range(4) for aa in range(2)]
    def tr_reads(lo, hi):
        for (kk, t, aa) in trl[lo:hi]:
            if kk == 2 and t == 0 and aa == 0:
                for k in range(8): a(f"v_add_u32 v{24+k}, 0x10000, v{24+k}")
            a(f"ds_read_b64_tr_b16 {d(192+16*kk+4*t+2*aa)}, v{24+2*t+aa} offset:{(kk&1)*32768}")
    a("v_cmp_u_f32 vcc, v8, v8\ns_cbranch_vccz L_sok")
    a("v_mov_b32 v4, 1\nds_write_b32 v38, v4")
    a.label("L_sok")
    if cfg.sround:
        a("v_cvt_pk_bf16_f32 v4, v8, v9\nv_cvt_pk_bf16_f32 v5, v10, v11")
        a("v_lshlrev_b32 v8, 16, v4\nv_and_b32 v9, 0xffff0000, v4\nv_lshlrev_b32 v10, 16, v5\nv_and_b32 v11, 0xffff0000, v5")
        for k in range(4): a(f"v_mul_f32 v{8+k}, {f2u(128 ** -0.5)}, v{8+k}")
        a("v_cvt_pk_bf16_f32 v4, v8, v9\nv_cvt_pk_bf16_f32 v5, v10, v11")
        a("v_lshlrev_b32 v8, 16, v4\nv_and_b32 v9, 0xffff0000, v4\nv_lshlrev_b32 v10, 16, v5\nv_and_b32 v11, 0xffff0000, v5")
    a("v_max3_f32 v12, v8, v9, v10\nv_max_f32 v12, v12, v11")
    swapred("v_max_f32", (12,), (13,), 16)
    swapred("v_max_f32", (12,), (13,), 32)
    a("ds_write_b32 v32, v12")
    tr_reads(0, 12)
    a("s_waitcnt lgkmcnt(12)")
    a("s_barrier")
    stamp("b5")
    a(f"ds_read_b128 {q(64)}, v33\nds_read_b128 {q(68)}, v33 offset:16\nds_read_b32 v72, v38")
    tr_reads(12, 24)
    a("s_waitcnt lgkmcnt(12)")
    a(f"v_readfirstlane_b32 s{sT0}, v72")
    a("v_max3_f32 v12, v64, v65, v66\nv_max3_f32 v13, v67, v68, v69\nv_max3_f32 v12, v12, v70, v71\nv_max_f32 v12, v12, v13")
    a(f"s_cmp_lg_u32 s{sT0}, 0\ns_cbranch_scc1 L_h2retry")
    a.label("L_h2ok")
    a(f"v_mul_f32 v12, s{sC}, v12")
    for k in range(4): a(f"v_fma_f32 v{8+k}, v{8+k}, s{sC}, -v12")
    for k in range(4): a(f"v_exp_f32 v{8+k}, v{8+k}")
    a("v_cvt_pk_bf16_f32 v4, v8, v10\nv_cvt_pk_bf16_f32 v5, v9, v11")
    a("v_add_f32 v8, v8, v9\nv_add_f32 v10, v10, v11\nv_add_f32 v8, v8, v10")
    a("ds_write2_b32 v34, v4, v5 offset0:0 offset1:2\nds_write_b32 v36, v8")
    tr_reads(24, 32)
    a("s_waitcnt lgkmcnt(8)")
    a("s_barrier")
    stamp("b6")
    for kk in range(4): a(f"ds_read_b128 {q(64+4*kk)}, v35 offset:{kk*1024}")
    a(f"s_lshr_b32 s{sT0}, s2, 7\ns_lshl_b32 s{sT0}, s{sT0}, 21\ns_and_b32 s{sT1}, s2, 127\ns_lshl_b32 s{sT1}, s{sT1}, 10\ns_add_u32 s{sT0}, s{sT0}, s{sT1}\ns_add_u32 s{sT0}, s{sT0}, {WS_O}")
    for kk in range(4):
        a(f"s_waitcnt lgkmcnt({3-kk})")
        for t in range(4):
            mfma(80+4*t, 192+16*kk+4*t, 64+4*kk, "0" if kk == 0 else 80+4*t)
    for tp in range(2):
        for u in range(2):
            r = 80+4*(2*tp+u)
            a(f"v_cvt_pk_bf16_f32 v{96+4*tp+2*u}, v{r}, v{r+1}\nv_cvt_pk_bf16_f32 v{97+4*tp+2*u}, v{r+2}, v{r+3}")
        a(f"buffer_store_dwordx4 {q(96+4*tp)}, v37, s[{S_WS}:{S_WS+3}], s{sT0} offen offset:{64*tp} sc1")
    stamp("ost")
    a("v_bitop3_b32 v4, v96, v97, v98 bitop3:0x96\nv_bitop3_b32 v5, v99, v100, v101 bitop3:0x96\nv_bitop3_b32 v4, v4, v102, v103 bitop3:0x96\nv_xor_b32 v4, v4, v5")
    a(f"ds_write_b32 v36, v4 offset:{L_CK-L_LS}")
    a("s_waitcnt lgkmcnt(0)")
    a("s_barrier")
    a(f"s_cmp_ge_u32 s{sW}, 4\ns_cbranch_scc1 L_p45b")
    a(f"s_cmp_lg_u32 s{sW}, 0\ns_cbranch_scc1 L_norec")
    a(f"v_lshlrev_b32 v4, 7, v{vI}\nv_lshl_add_u32 v4, v{vS}, 5, v4\nv_add_u32 v4, {L_LS}, v4")
    a(f"ds_read_b128 {q(64)}, v4\nds_read_b128 {q(68)}, v4 offset:16\nds_read_b128 {q(72)}, v4 offset:{L_CK-L_LS}\nds_read_b128 {q(76)}, v4 offset:{L_CK-L_LS+16}")
    a(f"s_and_b32 s{sT0}, s2, 127\ns_lshl_b32 s{sT0}, s{sT0}, 1\ns_lshr_b32 s{sT1}, s2, 7\ns_add_u32 s{sT0}, s{sT0}, s{sT1}\ns_lshl_b32 s{sT0}, s{sT0}, 8\ns_add_u32 s{sT0}, s{sT0}, {WS_REC}")
    a(f"v_lshlrev_b32 v4, 4, v{vL}\nv_mov_b32 v15, s{sTAG}")
    a("s_waitcnt lgkmcnt(2)")
    a("v_add_f32 v64, v64, v65\nv_add_f32 v66, v66, v67\nv_add_f32 v68, v68, v69\nv_add_f32 v70, v70, v71\nv_add_f32 v64, v64, v66\nv_add_f32 v68, v68, v70\nv_add_f32 v13, v64, v68")
    a("s_waitcnt lgkmcnt(0)")
    a("v_bitop3_b32 v72, v72, v73, v74 bitop3:0x96\nv_bitop3_b32 v75, v75, v76, v77 bitop3:0x96\nv_bitop3_b32 v72, v72, v78, v79 bitop3:0x96\nv_xor_b32 v14, v72, v75")
    for wh in (16, 32):
        a(f"v_mov_b32 v5, v13\nv_mov_b32 v6, v14\nv_permlane{wh}_swap_b32 v13, v5\nv_permlane{wh}_swap_b32 v14, v6\nv_add_f32 v13, v13, v5\nv_xor_b32 v14, v14, v6")
    a("v_bitop3_b32 v14, v14, v12, v13 bitop3:0x96")
    a("s_mov_b64 exec, 0xffff")
    a(f"buffer_store_dwordx4 {q(12)}, v4, s[{S_WS}:{S_WS+3}], s{sT0} offen sc1")
    a("s_mov_b64 exec, -1")
    a.label("L_norec")
    a(f"v_lshlrev_b32 v6, 13, v{vS}\nv_lshl_add_u32 v6, v{vI}, 4, v6")
    a(f"s_lshl_b32 s{sT0}, s{sFS}, 16\ns_lshl_b32 s{sT1}, s{sW}, 8\ns_add_u32 s{sT0}, s{sT0}, s{sT1}")
    for ks in range(2):
        for r4 in range(2):
            a(f"s_add_u32 s{sT1}, s{sT0}, {(32*ks+4*r4)*1024}")
            for r in range(4):
                a(f"buffer_load_dwordx4 {q(128+32*ks+16*r4+4*r)}, v6, s[{S_WO}:{S_WO+3}], s{sT1} offen offset:{1024*r}{nt}")
    a("s_waitcnt vmcnt(16)")
    stamp("drain")
    a("s_barrier")
    stamp("b8")
    a(f"v_and_b32 v4, 7, v{vI}\nv_lshlrev_b32 v4, 8, v4\nv_lshrrev_b32 v5, 3, v{vI}\nv_lshl_add_u32 v4, v5, 7, v4\nv_lshl_add_u32 v4, v{vS}, 5, v4\nv_add_u32 v16, {L_CP}, v4")
    a(f"v_mov_b32 v17, {L_VAL}\nv_lshlrev_b32 v18, 4, v{vL}")
    a("s_waitcnt vmcnt(8)")
    transpose(128, 192)
    a("s_waitcnt vmcnt(0)")
    transpose(160, 128)
    stamp("wo")
    a(f"s_cmp_ge_u32 s{sH}, 28\ns_cbranch_scc1 L_nogu")
    a(f"v_lshrrev_b32 v4, 2, v{vI}\nv_lshlrev_b32 v4, 2, v4\nv_add_u32 v4, v4, v{vS}\nv_mul_u32_u24 v4, {8*3584}, v4\nv_and_b32 v5, 3, v{vI}\nv_lshl_add_u32 v6, v5, 4, v4")
    a(f"s_lshr_b32 s{sT0}, s{sW}, 1\ns_mul_i32 s{sT0}, s{sT0}, {256*3584}\ns_lshl_b32 s{sT1}, s{sFS}, 6\ns_add_u32 s{sT0}, s{sT0}, s{sT1}")
    for gg in range(2):
        for r in range(8):
            a(f"s_add_u32 s{sT1}, s{sT0}, {(128*gg+r)*3584}")
            a(f"buffer_load_dwordx4 {q((160 if gg == 0 else 224)+4*r)}, v6, s[{S_WGU}:{S_WGU+3}], s{sT1} offen{nt}")
    a.label("L_nogu")
    a(f"s_lshl_b32 s{sK3}, s{sB45}, 6\ns_add_u32 s{sK3}, s{sK3}, s{sFS}\ns_lshl_b32 s{sK3}, s{sK3}, 10\ns_lshl_b32 s{sT1}, s{sW}, 8\ns_add_u32 s{sK3}, s{sK3}, s{sT1}")
    a(f"s_add_u32 s{sK2}, s{sK3}, {WS_H4}")
    a.label("L_b10a")
    a("s_barrier")
    a(f"ds_read_b128 {q(20)}, v17\nds_read_b128 {q(8)}, v16\nds_read_b128 {q(12)}, v16 offset:16")
    a("s_waitcnt lgkmcnt(2)")
    a("v_bitop3_b32 v20, v20, v21, v22 bitop3:0x96\nv_cmp_ne_u32 vcc, v20, v23\ns_cbranch_vccz L_h3oka")
    a(f"s_add_u32 s{sCNT}, s{sCNT}, 1\ns_cmp_ge_u32 s{sCNT}, {SPIN}\ns_cbranch_scc1 L_h3oka")
    a("s_waitcnt lgkmcnt(0)\ns_barrier\ns_branch L_b10a")
    a.label("L_h3oka")
    stamp("b10")
    a("s_waitcnt lgkmcnt(0)")
    for c in ("quad_perm:[1,0,3,2]", "quad_perm:[2,3,0,1]", "row_half_mirror"):
        for k in range(8): dpp("v_add_f32", 8+k, 8+k, 8+k, c)
    for k in range(4): a(f"v_cvt_pk_bf16_f32 v{20+k}, v{8+2*k}, v{9+2*k}")
    for k in range(4): a(f"v_mov_b32_dpp v{24+k}, v{20+k} row_ror:8 row_mask:0xf bank_mask:0xf")
    for ks in range(2):
        for i in range(8):
            mfma(64+4*i, 20+4*ks, (192 if ks == 0 else 128)+4*i, "0" if ks == 0 else 64+4*i)
    for k in range(4): a(f"v_cvt_pk_bf16_f32 v{8+k}, v{64+8*k}, v{68+8*k}")
    a("s_mov_b64 exec, 0xffff")
    a(f"buffer_store_dwordx4 {q(8)}, v18, s[{S_WS}:{S_WS+3}], s{sK2} offen sc1")
    a("s_mov_b64 exec, -1")
    stamp("h4pub")
    a(f"s_cmp_ge_u32 s{sH}, 28\ns_cbranch_scc1 L_fin")
    a("s_waitcnt vmcnt(0)")
    a("s_branch L_b11")

    a.label("L_p45b")
    a(f"s_and_b32 s{sK0}, s{sW}, 3")
    a(f"v_lshrrev_b32 v4, 3, v{vI}\nv_lshlrev_b32 v4, 3, v4\nv_add_u32 v4, v4, v{vS}\nv_lshlrev_b32 v4, 15, v4\nv_and_b32 v5, 7, v{vI}\nv_lshl_add_u32 v6, v5, 4, v4")
    a(f"s_lshl_b32 s{sT0}, s{sK0}, 20\ns_lshl_b32 s{sT1}, s{sFS}, 7\ns_add_u32 s{sT0}, s{sT0}, s{sT1}")
    for gg in range(2):
        for r in range(8):
            a(f"s_add_u32 s{sT1}, s{sT0}, {(64*gg+16*(r>>2)+(r&3))*8192}")
            a(f"buffer_load_dwordx4 {q(128+32*gg+4*r)}, v6, s[{S_WUV}:{S_WUV+3}], s{sT1} offen{nt}")
    a(f"v_lshlrev_b32 v16, 10, v{vS}\nv_lshl_add_u32 v16, v{vI}, 4, v16")
    a(f"v_and_b32 v4, 7, v{vI}\nv_lshl_add_u32 v4, v4, 2, v{vS}\nv_lshlrev_b32 v17, 9, v4")
    a(f"s_lshl_b32 s{sK1}, s{sH}, 2\ns_add_u32 s{sK1}, s{sK1}, s{sB45}\ns_lshl_b32 s{sK1}, s{sK1}, 15\ns_lshl_b32 s{sT1}, s{sK0}, 8\ns_add_u32 s{sK1}, s{sK1}, s{sT1}\ns_add_u32 s{sK1}, s{sK1}, {WS_O}")
    a(f"s_lshl_b32 s{sK2}, s{sB45}, 14\ns_lshl_b32 s{sT1}, s{sH}, 4\ns_add_u32 s{sK2}, s{sK2}, s{sT1}\ns_add_u32 s{sK2}, s{sK2}, {WS_REC}")
    def h3_loads():
        a(f"buffer_load_dwordx4 {q(96)}, v17, s[{S_WS}:{S_WS+3}], s{sK2} offen sc1")
        for t in range(8):
            a(f"s_add_u32 s{sT1}, s{sK1}, {t*4096}")
            a(f"buffer_load_dwordx4 {q(64+4*t)}, v16, s[{S_WS}:{S_WS+3}], s{sT1} offen sc1")
    a("s_waitcnt vmcnt(16)")
    stamp("drain")
    a("s_barrier")
    stamp("b8")
    h3_loads()
    stamp("h3iss")
    a(f"v_lshlrev_b32 v6, 13, v{vS}\nv_lshl_add_u32 v6, v{vI}, 4, v6")
    a(f"s_lshl_b32 s{sT0}, s{sFS}, 15\ns_lshl_b32 s{sT1}, s{sK0}, 8\ns_add_u32 s{sT0}, s{sT0}, s{sT1}")
    for r4 in range(2):
        for r in range(4):
            a(f"buffer_load_dwordx4 {q(224+16*r4+4*r)}, v6, s[{S_WD}:{S_WD+3}], s{sT0} offen offset:{1024*r}{nt}")
        if r4 == 0: a(f"s_add_u32 s{sT0}, s{sT0}, 4096")
    a(f"v_and_b32 v4, 1, v{vI}\nv_lshlrev_b32 v4, 4, v4\nv_mov_b32 v5, 0xffff\nv_lshlrev_b32 v4, v4, v5\nv_bfe_u32 v5, v{vI}, 1, 2")
    for k in range(4): a(f"v_cmp_eq_u32 vcc, {k}, v5\nv_cndmask_b32 v{12+k}, 0, v4, vcc")
    a(f"s_lshl_b32 s{sT0}, s{sK0}, 8\ns_add_u32 s{sT0}, s{sT0}, {L_CS}")
    a(f"v_and_b32 v4, 1, v{vS}\nv_lshlrev_b32 v4, 3, v4\nv_lshl_add_u32 v4, v{vI}, 4, v4\nv_add_u32 v18, s{sT0}, v4")
    a(f"v_and_b32 v4, 4, v{vI}\nv_add_u32 v4, v4, v{vS}\nv_lshl_add_u32 v19, v4, 4, s{sT0}")
    a(f"s_lshl_b32 s{sT0}, s{sK0}, 9\ns_add_u32 s{sT0}, s{sT0}, {L_CP}")
    a(f"v_lshrrev_b32 v4, 3, v{vI}\nv_lshlrev_b32 v4, 8, v4\nv_and_b32 v5, 7, v{vI}\nv_lshl_add_u32 v4, v5, 5, v4\nv_lshrrev_b32 v5, 1, v{vS}\nv_lshl_add_u32 v4, v5, 4, v4\nv_add_u32 v20, s{sT0}, v4")
    a(f"v_mov_b32 v22, {L_VAL}\nv_lshl_add_u32 v21, s{sK0}, 2, v22")
    stamp("dniss")
    a("s_waitcnt vmcnt(25)")
    stamp("wuv0")
    transpose(128, 192)
    a("s_waitcnt vmcnt(17)")
    transpose(160, 128)
    stamp("wuv")
    a("s_waitcnt vmcnt(16)")
    stamp("rec")
    a.label("L_h3calc")
    a("v_mov_b32 v24, v96")
    for c in ("quad_perm:[1,0,3,2]", "quad_perm:[2,3,0,1]", "row_half_mirror"): dpp("v_max_f32", 24, 24, 24, c)
    a(f"v_bitop3_b32 v26, v96, v97, v98 bitop3:0x96\nv_xor_b32 v27, s{sTAG}, v99")
    swapred("v_max_f32", (24,), (25,), 16)
    swapred("v_max_f32", (24,), (25,), 32)
    a("v_sub_f32 v24, v96, v24\nv_exp_f32 v24, v24\nv_cmp_ne_u32 vcc, 0, v27\nv_mul_f32 v25, v24, v97")
    a(f"s_cmp_lg_u64 vcc, 0\ns_cselect_b32 s{sT2}, 1, 0")
    for c in ("quad_perm:[1,0,3,2]", "quad_perm:[2,3,0,1]", "row_half_mirror"): dpp("v_add_f32", 25, 25, 25, c)
    swapred("v_add_f32", (25,), (27,), 16)
    swapred("v_add_f32", (25,), (27,), 32)
    a("v_rcp_f32 v25, v25\nv_mul_f32 v24, v24, v25\nv_cvt_pk_bf16_f32 v24, v24, v24")
    a(f"s_cmp_eq_u32 s{sK0}, 0\ns_cselect_b32 s{sEX}, 0x00ff00ff, 0\ns_mov_b32 s{sEX+1}, s{sEX}")
    a(f"v_cndmask_b32 v26, 0, v26, s[{sEX}:{sEX+1}]")
    for t in range(8):
        o = 100 + 4*(t&1)
        for k in range(4): a(f"v_and_b32_dpp v{o+k}, v24, v{12+k} row_newbcast:{t} row_mask:0xf bank_mask:0xf")
        a(f"s_waitcnt vmcnt({15-t})")
        mfma(8, o, 64+4*t, "0" if t == 0 else 8)
        a(f"v_bitop3_b32 v26, v26, v{64+4*t}, v{65+4*t} bitop3:0x96\nv_bitop3_b32 v26, v26, v{66+4*t}, v{67+4*t} bitop3:0x96")
    stamp("comb")
    a("v_cvt_pk_bf16_f32 v4, v8, v9\nv_cvt_pk_bf16_f32 v5, v10, v11")
    a(f"ds_write_b64 v18, {d(4)}")
    a(f"ds_read_b128 {q(100)}, v19\nds_read_b128 {q(104)}, v19 offset:128")
    for c in ("quad_perm:[1,0,3,2]", "quad_perm:[2,3,0,1]", "row_half_mirror", "row_mirror"): dpp("v_xor_b32", 26, 26, 26, c)
    for gg in range(2):
        a(f"s_waitcnt lgkmcnt({1-gg})")
        for i in range(8):
            mfma(64+4*i, 100+4*gg, (192 if gg == 0 else 128)+4*i, "0" if gg == 0 else 64+4*i)
        swapred("v_xor_b32", (26,), (27,), 16 if gg == 0 else 32)
    a(f"s_mul_i32 s{sT2}, s{sT2}, 0x5bd1e995\ns_lshl_b32 s{sT2}, s{sT2}, s{sK0}\nv_mov_b32 v27, s{sT2}\nv_cmp_eq_u32 vcc, 0, v27\nv_cndmask_b32 v26, v27, v26, vcc")
    a("ds_write_b32 v21, v26")
    a(f"s_mov_b32 s{sEX}, 0\ns_mov_b32 s{sEX+1}, -1")
    for k in range(4): a(f"v_cndmask_b32 v{8+k}, v{64+4*k}, v{80+4*k}, s[{sEX}:{sEX+1}]")
    a("s_mov_b32 exec_lo, 0xff0000ff\ns_mov_b32 exec_hi, 0xff0000ff")
    a(f"ds_write_b128 v20, {q(8)}")
    a("s_mov_b64 exec, -1")
    a("s_waitcnt lgkmcnt(0)")
    a("s_barrier")
    a(f"ds_read_b128 {q(28)}, v22")
    a("s_waitcnt lgkmcnt(0)")
    a("v_bitop3_b32 v28, v28, v29, v30 bitop3:0x96\nv_cmp_ne_u32 vcc, v28, v31\ns_cbranch_vccz L_h3okb")
    a(f"s_add_u32 s{sCNT}, s{sCNT}, 1\ns_cmp_ge_u32 s{sCNT}, {SPIN}\ns_cbranch_scc1 L_h3fail")
    a("s_barrier\ns_sleep 1")
    h3_loads()
    a("s_waitcnt vmcnt(0)\ns_branch L_h3calc")
    a.label("L_h3fail")
    a(f"v_mov_b32 v4, 3\nv_mov_b32 v5, 0\nbuffer_store_dword v4, v5, s[{S_DBG}:{S_DBG+3}], 0 offen offset:12")
    a.label("L_h3okb")
    a(f"s_cmp_ge_u32 s{sH}, 28\ns_cbranch_scc1 L_fin")
    a("s_waitcnt vmcnt(0)")
    transpose(224, 128)

    a.label("L_b11")
    a(f"v_lshlrev_b32 v16, 10, v{vS}\nv_lshl_add_u32 v16, v{vI}, 4, v16")
    a(f"s_and_b32 s{sK0}, s{sW}, 3\ns_lshr_b32 s{sK1}, s{sW}, 2")
    a(f"s_lshl_b32 s{sK2}, s{sB45}, 16\ns_lshl_b32 s{sT1}, s{sK1}, 15\ns_add_u32 s{sK2}, s{sK2}, s{sT1}\ns_lshl_b32 s{sT1}, s{sK0}, 8\ns_add_u32 s{sK2}, s{sK2}, s{sT1}\ns_add_u32 s{sK2}, s{sK2}, {WS_H4}")
    a(f"v_lshlrev_b32 v17, 4, v{vL}\ns_lshl_b32 s{sT2}, s{sB45}, 10")
    def h4_loads():
        for t in range(8):
            a(f"s_add_u32 s{sT1}, s{sK2}, {t*4096}")
            a(f"buffer_load_dwordx4 {q(64+4*t)}, v16, s[{S_WS}:{S_WS+3}], s{sT1} offen sc1")
    a("s_barrier")
    stamp("b11")
    a(f"buffer_load_dwordx4 {q(96)}, v17, s[{S_X}:{S_X+3}], s{sT2} offen")
    h4_loads()
    a(f"v_and_b32 v4, 1, v{vI}\nv_lshlrev_b32 v4, 4, v4\nv_mov_b32 v5, 0x3f80\nv_lshlrev_b32 v4, v4, v5\nv_bfe_u32 v5, v{vI}, 1, 2")
    for k in range(4): a(f"v_cmp_eq_u32 vcc, {k}, v5\nv_cndmask_b32 v{12+k}, 0, v4, vcc")
    a(f"s_lshl_b32 s{sT0}, s{sK1}, 11\ns_lshl_b32 s{sT1}, s{sK0}, 9\ns_add_u32 s{sT0}, s{sT0}, s{sT1}\ns_add_u32 s{sT0}, s{sT0}, {L_AP}")
    a(f"v_and_b32 v4, 1, v{vS}\nv_lshlrev_b32 v4, 4, v4\nv_lshl_add_u32 v4, v{vI}, 5, v4\nv_add_u32 v18, s{sT0}, v4")
    a(f"v_lshlrev_b32 v19, 5, v{vL}\nv_mov_b32 v20, {L_RETRY}")
    a(f"s_cmp_ge_u32 s{sW}, 4\ns_cbranch_scc1 L_f47")
    transpose(160, 128)
    transpose(224, 192)
    a(f"s_lshr_b32 s{sT0}, s{sW}, 1\ns_lshl_b32 s{sT1}, s{sT0}, 7")
    a(f"v_and_b32 v4, 12, v{vI}\nv_add_u32 v4, v4, v{vS}\nv_lshl_add_u32 v21, v4, 2, s{sT1}")
    a(f"s_lshl_b32 s{sT0}, s{sT0}, 10\ns_and_b32 s{sT1}, s{sW}, 1\ns_lshl_b32 s{sT1}, s{sT1}, 7\ns_add_u32 s{sT0}, s{sT0}, s{sT1}\ns_add_u32 s{sT0}, s{sT0}, {L_GP}")
    a(f"v_and_b32 v4, 3, v{vI}\nv_lshlrev_b32 v4, 5, v4\nv_lshl_add_u32 v4, v{vS}, 8, v4\nv_add_u32 v22, s{sT0}, v4")
    a(f"v_add_u32 v23, {L_HS}, v17")
    a(f"s_mov_b32 s{sK3}, 0x3f803f80")
    a("s_waitcnt vmcnt(8)")
    for k in range(4): a(f"v_lshlrev_b32 v{108+2*k}, 16, v{96+k}\nv_and_b32 v{109+2*k}, 0xffff0000, v{96+k}")
    def h4_reduce():
        for t in range(8):
            a(f"s_waitcnt vmcnt({7-t})")
            mfma(8, 12, 64+4*t, "0" if t == 0 else 8)
        a(f"ds_write_b128 v18, {q(8)}")
        a("s_waitcnt lgkmcnt(0)")
    a.label("L_h4a")
    h4_reduce()
    stamp("h4red")
    a("s_barrier")
    a(f"ds_read_b128 {q(24)}, v19 offset:{L_AP}\nds_read_b128 {q(28)}, v19 offset:{L_AP+16}\nds_read_b128 {q(32)}, v19 offset:{L_AP+2048}\nds_read_b128 {q(36)}, v19 offset:{L_AP+2064}")
    a("s_waitcnt lgkmcnt(0)")
    for k in range(8): a(f"v_add_f32 v{24+k}, v{24+k}, v{32+k}")
    for k in range(4): a(f"v_cvt_pk_bf16_f32 v{32+k}, v{24+2*k}, v{25+2*k}")
    for k in range(4): a(f"v_lshlrev_b32 v{24+2*k}, 16, v{32+k}\nv_and_b32 v{25+2*k}, 0xffff0000, v{32+k}")
    for k in range(8): a(f"v_add_f32 v{24+k}, v{24+k}, v{108+k}")
    for k in range(4): a(f"v_cvt_pk_bf16_f32 v{32+k}, v{24+2*k}, v{25+2*k}")
    a(f"v_dot2_f32_bf16 v40, v32, s{sK3}, 0\nv_dot2_f32_bf16 v41, v32, v32, 0")
    for k in range(1, 4): a(f"v_dot2_f32_bf16 v40, v{32+k}, s{sK3}, v40\nv_dot2_f32_bf16 v41, v{32+k}, v{32+k}, v41")
    a(f"ds_write_b128 v23, {q(32)}")
    for c in ("quad_perm:[1,0,3,2]", "quad_perm:[2,3,0,1]", "row_half_mirror", "row_mirror"):
        dpp("v_add_f32", 40, 40, 40, c); dpp("v_add_f32", 41, 41, 41, c)
    swapred("v_add_f32", (40, 41), (42, 43), 16)
    swapred("v_add_f32", (40, 41), (42, 43), 32)
    a("v_cmp_u_f32 vcc, v40, v40\ns_cbranch_vccz L_h4ok")
    a(f"s_add_u32 s{sCNT}, s{sCNT}, 1\ns_cmp_ge_u32 s{sCNT}, {SPIN}\ns_cbranch_scc1 L_h4fail")
    a("v_mov_b32 v4, 1\nds_write_b32 v20, v4\ns_waitcnt lgkmcnt(0)\ns_barrier\ns_sleep 1")
    h4_loads()
    a("s_branch L_h4a")
    a.label("L_h4fail")
    a(f"v_mov_b32 v4, 4\nv_mov_b32 v5, 0\nbuffer_store_dword v4, v5, s[{S_DBG}:{S_DBG+3}], 0 offen offset:16")
    a.label("L_h4ok")
    stamp("h4ok")
    ln_stats(40, 41, 42)
    ln_apply(32, 4, 40, 41, 24)
    for gg in range(2):
        for k in range(4): a(f"ds_bpermute_b32 v{100+4*gg+k}, v21, v{32+k} offset:{64*gg}")
    a("v_mov_b32 v4, 0\nds_write_b32 v20, v4")
    for gg in range(2):
        a(f"s_waitcnt lgkmcnt({5-4*gg})")
        for i in range(8):
            mfma(64+4*i, 100+4*gg, (128 if gg == 0 else 192)+4*i, "0" if gg == 0 else 64+4*i)
    a("s_mov_b32 exec_lo, 0x00f0000f\ns_mov_b32 exec_hi, 0xf0000f00")
    for k in range(4): a(f"ds_write2_b32 v22, v{64+8*k}, v{68+8*k} offset0:{2*k} offset1:{2*k+1}")
    a("s_waitcnt lgkmcnt(0)")
    a("s_barrier")
    a("s_branch L_fin")
    a.label("L_f47")
    a(f"v_lshlrev_b32 v21, 2, v{vL}")
    a(f"s_lshl_b32 s{sT0}, s{sK0}, 6\ns_add_u32 s{sT0}, s{sT0}, {L_AS}")
    a(f"v_and_b32 v4, 31, v{vL}\nv_lshl_add_u32 v22, v4, 1, s{sT0}\nv_lshl_add_u32 v23, v{vS}, 4, s{sT0}")
    a(f"s_lshl_b32 s{sK3}, s{sB45}, 6\ns_add_u32 s{sK3}, s{sK3}, s{sFS}\ns_lshl_b32 s{sK3}, s{sK3}, 10\ns_lshl_b32 s{sT1}, s{sK0}, 8\ns_add_u32 s{sK3}, s{sK3}, s{sT1}\ns_add_u32 s{sK3}, s{sK3}, {WS_H5}")
    a.label("L_h4b")
    h4_reduce()
    a("s_barrier")
    a("s_barrier")
    a("ds_read_b32 v4, v20")
    for p in range(8): a(f"ds_read_b32 v{24+p}, v21 offset:{L_GP+256*p}")
    a("s_waitcnt lgkmcnt(8)")
    a(f"v_readfirstlane_b32 s{sT0}, v4\ns_cmp_eq_u32 s{sT0}, 0\ns_cbranch_scc1 L_h4okb")
    a("s_waitcnt lgkmcnt(0)\ns_sleep 1")
    h4_loads()
    a("s_branch L_h4b")
    a.label("L_h4okb")
    stamp("b13")
    a("s_waitcnt lgkmcnt(0)")
    a("v_add_f32 v24, v24, v25\nv_add_f32 v26, v26, v27\nv_add_f32 v28, v28, v29\nv_add_f32 v30, v30, v31\nv_add_f32 v24, v24, v26\nv_add_f32 v28, v28, v30\nv_add_f32 v24, v24, v28")
    bfround(24, 24)
    a("v_mov_b32 v25, v24\nv_permlane32_swap_b32 v24, v25")
    k1 = -2.0 * math.sqrt(2.0/math.pi) * math.log2(math.e)
    a(f"v_mul_f32 v26, v24, v24\nv_mov_b32 v27, {f2u(k1)}\nv_fmamk_f32 v26, v26, {f2u(k1*0.044715)}, v27\nv_mul_f32 v26, v26, v24")
    a("v_exp_f32 v26, v26\nv_add_f32 v26, 1.0, v26\nv_rcp_f32 v26, v26\nv_mul_f32 v26, v26, v24")
    bfround(26, 26)
    a("v_mul_f32 v26, v26, v25\nv_cvt_pk_bf16_f32 v26, v26, v26")
    a(f"ds_write_b16 v22, v26\nds_read_b128 {q(28)}, v23")
    a("s_waitcnt lgkmcnt(0)")
    for i in range(8): mfma(64+4*i, 28, 128+4*i, "0")
    for k in range(4): a(f"v_cvt_pk_bf16_f32 v{8+k}, v{64+8*k}, v{68+8*k}")
    a("s_mov_b64 exec, 0xffff")
    a(f"buffer_store_dwordx4 {q(8)}, v17, s[{S_WS}:{S_WS+3}], s{sK3} offen sc1")
    a("s_mov_b64 exec, -1")
    stamp("h5pub")
    a(f"s_cmp_ge_u32 s{sFS}, 8\ns_cbranch_scc1 L_fin")
    a(f"s_cmp_lg_u32 s{sW}, 4\ns_cbranch_scc1 L_fin")
    a(f"v_lshrrev_b32 v4, 3, v{vI}\nv_lshl_add_u32 v4, v{vS}, 1, v4\nv_lshlrev_b32 v4, 10, v4\nv_and_b32 v5, 7, v{vI}\nv_lshl_add_u32 v16, v5, 4, v4")
    a(f"s_lshl_b32 s{sK2}, s{sB45}, 16\ns_lshl_b32 s{sT1}, s{sFS}, 7\ns_add_u32 s{sK2}, s{sK2}, s{sT1}\ns_add_u32 s{sK2}, s{sK2}, {WS_H5}")
    a(f"v_and_b32 v4, 1, v{vS}\nv_lshlrev_b32 v4, 3, v4\nv_lshl_add_u32 v18, v5, 4, v4\ns_add_u32 s{sT0}, s{sT1}, {L_HS}\nv_add_u32 v19, s{sT0}, v18")
    a(f"ds_read_b64 {d(20)}, v19")
    a(f"s_lshl_b32 s{sK3}, s{sB45}, 10\ns_add_u32 s{sK3}, s{sK3}, s{sT1}")
    a("s_waitcnt vmcnt(0)")
    stamp("h5drain")
    a.label("L_h5")
    for t in range(7):
        a(f"s_add_u32 s{sT1}, s{sK2}, {t*8192}")
        a(f"buffer_load_dwordx4 {q(64+4*t)}, v16, s[{S_WS}:{S_WS+3}], s{sT1} offen sc1")
    a("s_waitcnt lgkmcnt(0)")
    a("v_lshlrev_b32 v24, 16, v20\nv_and_b32 v25, 0xffff0000, v20\nv_lshlrev_b32 v26, 16, v21\nv_and_b32 v27, 0xffff0000, v21")
    for t in range(7):
        a(f"s_waitcnt vmcnt({6-t})")
        mfma(8, 12, 64+4*t, "0" if t == 0 else 8)
    for k in range(4): dpp("v_add_f32", 8+k, 8+k, 8+k, "row_ror:8")
    a(f"v_cmp_u_f32 vcc, v8, v9\nv_cmp_u_f32 s[{sEX}:{sEX+1}], v10, v11\ns_or_b64 vcc, vcc, s[{sEX}:{sEX+1}]\ns_cbranch_vccz L_h5ok")
    a("s_sleep 1")
    spin_check("L_h5", 5)
    a.label("L_h5ok")
    a("v_cvt_pk_bf16_f32 v4, v8, v9\nv_cvt_pk_bf16_f32 v5, v10, v11")
    a("v_lshlrev_b32 v8, 16, v4\nv_and_b32 v9, 0xffff0000, v4\nv_lshlrev_b32 v10, 16, v5\nv_and_b32 v11, 0xffff0000, v5")
    for k in range(4): a(f"v_add_f32 v{8+k}, v{8+k}, v{24+k}")
    a("v_cvt_pk_bf16_f32 v4, v8, v9\nv_cvt_pk_bf16_f32 v5, v10, v11")
    a("s_mov_b32 exec_lo, 0x00ff00ff\ns_mov_b32 exec_hi, 0")
    a(f"buffer_store_dwordx2 {d(4)}, v18, s[{S_OUT}:{S_OUT+3}], s{sK3} offen")
    a("s_cmp_lg_u32 s2, 0\ns_cbranch_scc1 L_fin")
    a("s_mov_b64 exec, 1")
    a(f"v_mov_b32 v6, s{sTAG}\nv_mov_b32 v7, 0\nbuffer_store_dword v6, v7, s[{S_WS}:{S_WS+3}], 0 offen sc1")
    a("s_branch L_fin")

    a.label("L_h2retry")
    a(f"s_add_u32 s{sCNT}, s{sCNT}, 1\ns_cmp_ge_u32 s{sCNT}, {SPIN}\ns_cbranch_scc1 L_h2fail")
    a("s_waitcnt lgkmcnt(0)")
    for k in range(8): a(f"v_subrev_u32 v{24+k}, 0x10000, v{24+k}")
    a("s_barrier")
    for ks in range(16): a(f"ds_read_b128 {q(64+4*ks)}, v{16+(ks&3)} offset:{(ks>>2)*256}")
    a(f"s_cmp_lg_u32 s{sW}, 1\ns_cbranch_scc1 L_nofl")
    a("v_mov_b32 v4, 0\nds_write_b32 v38, v4\ns_sleep 1")
    qa_loads()
    a("s_waitcnt vmcnt(0)\ns_branch L_nofl")
    a.label("L_h2fail")
    a(f"v_mov_b32 v4, 2\nv_mov_b32 v5, 0\nbuffer_store_dword v4, v5, s[{S_DBG}:{S_DBG+3}], 0 offen offset:8")
    a("s_branch L_h2ok")

    a.label("L_fin")
    if cfg.stamps:
        stamp("end")
        a("s_nop 0")
        a("s_mov_b64 exec, -1\ns_waitcnt lgkmcnt(0)")
        for k in range(10): a(f"v_writelane_b32 v4, s{sST+2*k}, {k}")
        a(f"v_writelane_b32 v4, s{sCNT}, 10\nv_writelane_b32 v4, s81, 11")
        a(f"s_lshl_b32 s{sT0}, s2, 3\ns_add_u32 s{sT0}, s{sT0}, s{sW}\ns_lshl_b32 s{sT0}, s{sT0}, 6\ns_add_u32 s{sT0}, s{sT0}, {WS_STAMP}")
        a(f"v_lshlrev_b32 v5, 2, v{vL}\ns_mov_b64 exec, 0xffff")
        a(f"buffer_store_dword v4, v5, s[{S_WS}:{S_WS+3}], s{sT0} offen")
    a.label("L_end")
    a("s_endpgm")
    a.label("L_codeend")
    lines, added = hz.pad(a.lines)
    hdr = open("sequential_preLN__compressed_kv_cla__geglu_ffn__decode.s.ref").read().split("; Override launch")[0]
    s = hdr + f"; @launch grid=(256,1,1) block=(512,1,1) lds={LDS_BYTES}\n" + TARGET + "\n".join(lines) + "\n" + kernel_desc(KNAME, 256)
    return s, added

if __name__ == "__main__":
    out = sys.argv[1] if len(sys.argv) > 1 else "k.s"
    class C(Cfg): pass
    for kv in sys.argv[2:]:
        k, v = kv.split("=")
        setattr(C, k, eval(v))
    s, added = gen(C)
    open(out, "w").write(s)
    print("written", out, "nops added", added, "lines", s.count("\n"))
```

```python
import sys, struct
from asmlib import *
import hz

def f2u(x): return struct.unpack("<I", struct.pack("<f", x))[0]

WS_EPOCH = 0
WS_FLAGS = 0x1000
WS_H1    = 0x10000
WS_H2    = 0x100000
WS_O     = 0x200000
WS_REC   = 0x600000
WS_H4    = 0x700000
WS_H5    = 0x780000
WS_STAMP = 0x800000
L_QA = 131072
MB = 147456
L_MAXX = MB; L_LS = MB+512; L_CK = MB+2560; L_PT = MB+4608; L_QS = MB+8704
L_BAD = MB+9792; L_VAL = MB+9808; L_RETRY = MB+9824; L_CS = MB+9856; L_CP = MB+10880
L_AP = 0; L_GP = 4096; L_HS = 8192; L_AS = 9216
LDS_BYTES = MB + 12928

S_X, S_CKV, S_WQ, S_WUK, S_WUV, S_WO, S_WGU, S_WD, S_OUT, S_WS = 4, 8, 12, 16, 20, 24, 28, 32, 36, 40
S_PG, S_PU, S_DBG = 44, 46, 48
sW, sH, sJ, sTAG = 52, 53, 54, 55
sPLO, sPHI = 56, 57
sT0, sT1, sT2, sT3 = 58, 59, 60, 61
sM = 62
sCNT = 70
sB3, sB45, sFS = 71, 72, 73
sEX = 74
sC = 76
sK0, sK1, sK2, sK3 = 77, 78, 79, 80
sST = 82
SPIN = 200000

class Cfg:
    nt = " nt"
    sround = True
    stamps = False
    prefetch45 = True
    codepf = True
    b0 = True
    dbgstamps = False

def gen(cfg=Cfg):
    a = Asm()
    nt = cfg.nt
    vL, vI, vS = 1, 2, 3
    def stamp(name):
        if cfg.stamps and name in cfg.stamps:
            k = cfg.stamps.index(name)
            a(f"s_memrealtime s[{sST+2*k}:{sST+2*k+1}]")
    def srd_tail(s, size): a(f"s_mov_b32 s{s+2}, {size}\ns_mov_b32 s{s+3}, 0x20000")
    def q(r): return f"v[{r}:{r+3}]"
    def d(r): return f"v[{r}:{r+1}]"
    def transpose(src, dst):
        for dw in range(4):
            for k2 in range(4):
                r0 = src + 4*(2*k2) + dw; r1 = src + 4*(2*k2+1) + dw
                a(f"v_perm_b32 v{dst+4*(2*dw)+k2}, v{r1}, v{r0}, s{sPLO}")
                a(f"v_perm_b32 v{dst+4*(2*dw+1)+k2}, v{r1}, v{r0}, s{sPHI}")
    def mfma(dst, A, B, C):
        c = q(C) if isinstance(C, int) else C
        a(f"v_mfma_f32_16x16x32_bf16 {q(dst)}, {q(A)}, {q(B)}, {c}")
    def swapred(op, regs, tmps, which):
        for r, t in zip(regs, tmps): a(f"v_mov_b32 v{t}, v{r}")
        for r, t in zip(regs, tmps): a(f"v_permlane{which}_swap_b32 v{r}, v{t}")
        for r, t in zip(regs, tmps): a(f"{op} v{r}, v{r}, v{t}")
    def dpp(op, dst, src, other, ctl, bank="0xf"):
        a(f"{op}_dpp v{dst}, v{src}, v{other} {ctl} row_mask:0xf bank_mask:{bank}")
    def bfround(dst, src):
        a(f"v_cvt_pk_bf16_f32 v{dst}, v{src}, v{src}\nv_and_b32 v{dst}, 0xffff0000, v{dst}")
    def ln_stats(vs, vq, t0):
        a(f"v_mul_f32 v{vs}, {f2u(1.0/512)}, v{vs}")
        a(f"v_mul_f32 v{vq}, {f2u(1.0/512)}, v{vq}")
        a(f"v_fma_f32 v{vq}, -v{vs}, v{vs}, v{vq}")
        a(f"v_max_f32 v{vq}, 0, v{vq}")
        bfround(vs, vs); bfround(vq, vq)
        a(f"v_add_f32 v{vq}, {f2u(1e-5)}, v{vq}")
        bfround(vq, vq)
        a(f"v_sqrt_f32 v{vq}, v{vq}")
        bfround(vq, vq)
        a(f"v_rcp_f32 v{vq}, v{vq}")
    def ln_apply(src, n, vs, vq, t0):
        for k in range(n): a(f"v_lshlrev_b32 v{t0+2*k}, 16, v{src+k}\nv_and_b32 v{t0+2*k+1}, 0xffff0000, v{src+k}")
        for k in range(2*n): a(f"v_sub_f32 v{t0+k}, v{t0+k}, v{vs}")
        for k in range(n): a(f"v_cvt_pk_bf16_f32 v{src+k}, v{t0+2*k}, v{t0+2*k+1}")
        for k in range(n): a(f"v_lshlrev_b32 v{t0+2*k}, 16, v{src+k}\nv_and_b32 v{t0+2*k+1}, 0xffff0000, v{src+k}")
        for k in range(2*n): a(f"v_mul_f32 v{t0+k}, v{t0+k}, v{vq}")
        for k in range(n): a(f"v_cvt_pk_bf16_f32 v{src+k}, v{t0+2*k}, v{t0+2*k+1}")
    def spin_check(lbl_retry, code):
        l = a.newlabel("L_sp")
        a(f"s_add_u32 s{sCNT}, s{sCNT}, 1\ns_cmp_lt_u32 s{sCNT}, {SPIN}\ns_cbranch_scc1 {lbl_retry}")
        a(f"v_mov_b32 v4, {code}\nv_mov_b32 v5, 0\nbuffer_store_dword v4, v5, s[{S_DBG}:{S_DBG+3}], 0 offen offset:{4*code}")
    def make_tag():
        a("s_waitcnt lgkmcnt(0)")
        a(f"s_mul_i32 s{sTAG}, s{sTAG}, 0x9E3779B1\ns_add_u32 s{sTAG}, s{sTAG}, 0x7F4A7C15")
    def ckv_issue():
        a(f"s_and_b32 s{sT0}, s2, 127\ns_lshl_b32 s{sT0}, s{sT0}, 17\ns_lshl_b32 s{sT1}, s{sW}, 14\ns_add_u32 s{sT0}, s{sT0}, s{sT1}")
        a(f"v_lshlrev_b32 v4, 4, v{vL}")
        for r in range(16):
            a(f"s_add_u32 m0, s{sT1}, {r*1024}")
            a(f"v_xor_b32 v{5+(r&1)}, {r<<4}, v4")
            a(f"buffer_load_dwordx4 v{5+(r&1)}, s[{S_CKV}:{S_CKV+3}], s{sT0} offen{nt} lds")
            a(f"s_add_u32 s{sT0}, s{sT0}, 1024")

    kernel_begin(a, KNAME)
    a.label("L_code0")
    stamp("start")
    a("s_cmp_ge_u32 s2, 256\ns_cbranch_scc1 L_end")
    for s, n in ((S_X,'x'),(S_WQ,'wq'),(S_WS,'ws'),(S_WUK,'wuk'),(S_CKV,'ckv'),(S_WUV,'wuv'),(S_WO,'wo'),(S_WD,'wd'),(S_OUT,'out'),(S_PG,'wg'),(S_PU,'wu'),(S_DBG,'dbg')):
        a(f"s_load_dwordx2 s[{s}:{s+1}], s[0:1], {ARG[n]}")
    a(f"v_lshrrev_b32 v4, 6, v0\nv_and_b32 v{vL}, 63, v0")
    a(f"v_readfirstlane_b32 s{sW}, v4")
    a(f"v_and_b32 v{vI}, 15, v0\nv_bfe_u32 v{vS}, v0, 4, 2")
    for s, n in ((S_X,'x'),(S_WQ,'wq'),(S_WS,'ws'),(S_WUK,'wuk'),(S_CKV,'ckv'),(S_WUV,'wuv'),(S_WO,'wo'),(S_WD,'wd'),(S_OUT,'out'),(S_WGU,'wg'),(S_DBG,'dbg')):
        srd_tail(s, SIZE[n])
    a(f"s_and_b32 s{sH}, s2, 7\ns_lshr_b32 s{sT0}, s2, 6\ns_lshl_b32 s{sT0}, s{sT0}, 3\ns_or_b32 s{sH}, s{sH}, s{sT0}")
    a(f"s_bfe_u32 s{sJ}, s2, 0x30003")
    a(f"s_mov_b32 s{sPLO}, 0x05040100\ns_mov_b32 s{sPHI}, 0x07060302")
    a(f"s_bfe_u32 s{sB3}, s2, 0x20005")
    a(f"s_and_b32 s{sB45}, s{sJ}, 3")
    a(f"s_lshr_b32 s{sT0}, s{sJ}, 2\ns_lshl_b32 s{sFS}, s{sH}, 1\ns_add_u32 s{sFS}, s{sFS}, s{sT0}")
    for g in range(4):
        m = 0x000F000F << (4*g)
        a(f"s_mov_b32 s{sM+2*g}, {m:#x}\ns_mov_b32 s{sM+2*g+1}, {m:#x}")
    a(f"s_mov_b32 s{sCNT}, 0")
    if cfg.stamps:
        for k in range(1, 10): a(f"s_mov_b32 s{sST+2*k}, 0")
    a("s_waitcnt lgkmcnt(0)")
    stamp("karg")
    a(f"s_load_dword s{sTAG}, s[{S_WS}:{S_WS+1}], {WS_EPOCH}")
    a(f"s_bitcmp1_b32 s{sW}, 0\ns_cselect_b32 s{S_WGU}, s{S_PU}, s{S_PG}\ns_cselect_b32 s{S_WGU+1}, s{S_PU+1}, s{S_PG+1}")
    a(f"s_cmp_lg_u32 s{sW}, 0\ns_cbranch_scc1 L_not0")

    a(f"v_and_b32 v4, 3, v{vL}\nv_lshlrev_b32 v4, 10, v4")
    a(f"v_lshrrev_b32 v5, 2, v{vL}\nv_lshl_add_u32 v5, v5, 6, v4")
    a(f"v_lshl_add_u32 v4, v{vS}, 4, v4")
    a(f"s_lshl_b32 s{sT0}, s{sJ}, 7")
    for k in range(4): a(f"buffer_load_dwordx4 {q(8+4*k)}, v5, s[{S_X}:{S_X+3}], 0 offen offset:{16*k}")
    for k in range(2): a(f"buffer_load_dwordx4 {q(24+4*k)}, v4, s[{S_X}:{S_X+3}], s{sT0} offen offset:{64*k}")
    a(f"v_lshlrev_b32 v6, 16, v{vS}\nv_lshl_add_u32 v6, v{vI}, 4, v6")
    a(f"s_lshl_b32 s{sT0}, s{sJ}, 19\ns_lshl_b32 s{sT1}, s{sH}, 8\ns_add_u32 s{sT0}, s{sT0}, s{sT1}")
    for ks in range(2):
        for r in range(8):
            a(f"s_add_u32 s{sT1}, s{sT0}, {(32*ks+r)*8192}")
            a(f"buffer_load_dwordx4 {q(64+32*ks+4*r)}, v6, s[{S_WQ}:{S_WQ+3}], s{sT1} offen{nt}")
    a(f"s_mov_b32 s{sK0}, 0x3f803f80")
    a("v_mov_b32 v32, 0\nv_mov_b32 v33, 0")
    stamp("w0_iss")
    if cfg.b0: a("s_barrier")
    a("s_waitcnt vmcnt(18)")
    stamp("w0_x")
    for k in range(16):
        a(f"v_dot2_f32_bf16 v32, v{8+k}, s{sK0}, v32\nv_dot2_f32_bf16 v33, v{8+k}, v{8+k}, v33")
    for c in ("row_ror:4", "row_ror:8"):
        dpp("v_add_f32", 32, 32, 32, c); dpp("v_add_f32", 33, 33, 33, c)
    swapred("v_add_f32", (32, 33), (34, 35), 16)
    swapred("v_add_f32", (32, 33), (34, 35), 32)
    ln_stats(32, 33, 34)
    a("s_waitcnt vmcnt(16)")
    ln_apply(24, 8, 32, 33, 8)
    for g in range(4):
        for k in range(8):
            a(f"v_cndmask_b32 v{32+8*g+k}, 0, v{24+k}, s[{sM+2*g}:{sM+2*g+1}]")
    stamp("w0_ln")
    a(f"s_mov_b32 s{sK0}, 0x05030201\ns_mov_b32 s{sK1}, 0x06050302\ns_mov_b32 s{sK2}, 0x07060503")
    a(f"s_lshl_b32 s{sT0}, s{sH}, 3\ns_add_u32 s{sT0}, s{sT0}, s{sJ}\ns_lshl_b32 s{sT0}, s{sT0}, 11\ns_add_u32 s{sT0}, s{sT0}, {WS_H1}")
    a(f"v_lshlrev_b32 v4, 4, v{vL}")
    make_tag()
    a(f"v_mov_b32 v19, s{sTAG}\nv_mov_b32 v23, s{sTAG}")
    for ks in range(2):
        a(f"s_waitcnt vmcnt({8-8*ks})")
        if ks == 1: stamp("w0_wq")
        dst = 128 if ks == 0 else 64
        transpose(64+32*ks, dst)
        for g in range(4):
            for t in range(2):
                mfma(8+4*t, 32+8*g+4*ks, dst+4*(4*t+g), "0" if (ks == 0 and g == 0) else 8+4*t)
    for t in range(2):
        r = 8+4*t; o = 16+4*t
        a(f"v_perm_b32 v{o}, v{r+1}, v{r}, s{sK0}\nv_perm_b32 v{o+1}, v{r+2}, v{r+1}, s{sK1}\nv_perm_b32 v{o+2}, v{r+3}, v{r+2}, s{sK2}")
        a(f"buffer_store_dwordx4 {q(o)}, v4, s[{S_WS}:{S_WS+3}], s{sT0} offen offset:{1024*t} sc1")
    stamp("w0_pub")
    a("s_waitcnt vmcnt(0)")
    stamp("w0_drain")
    a("s_barrier\ns_barrier")
    ckv_issue()
    a("s_branch L_b3")

    a.label("L_not0")
    a(f"s_cmp_lg_u32 s{sW}, 1\ns_cbranch_scc1 L_not1")
    def qa_pub_addr():
        a(f"v_lshrrev_b32 v4, 2, v{vI}\nv_lshlrev_b32 v4, 1, v4\nv_lshrrev_b32 v5, 1, v{vS}\nv_add_u32 v4, v4, v5")
        a(f"s_lshl_b32 s{sT0}, s{sJ}, 3\ns_and_b32 s{sT1}, s{sH}, 15\ns_xor_b32 s{sT0}, s{sT0}, s{sT1}")
        a(f"v_xor_b32 v4, s{sT0}, v4\nv_lshlrev_b32 v4, 4, v4")
        a(f"v_and_b32 v5, 1, v{vS}\nv_lshl_add_u32 v4, v5, 3, v4")
        a(f"v_and_b32 v5, 3, v{vI}\nv_lshl_add_u32 v42, v5, 15, v4")
        a(f"v_lshlrev_b32 v43, 4, v{vL}")
        a(f"s_lshl_b32 s{sK3}, s{sH}, 10\ns_add_u32 s{sK3}, s{sK3}, {WS_H2}")
    qa_pub_addr()
    if cfg.b0: a("s_barrier")
    a(f"v_lshlrev_b32 v6, 13, v{vI}\nv_lshl_add_u32 v6, v{vS}, 4, v6")
    a(f"s_lshl_b32 s{sT0}, s{sJ}, 19\ns_lshl_b32 s{sT1}, s{sH}, 8\ns_add_u32 s{sT0}, s{sT0}, s{sT1}")
    for n_ in range(4):
        for ks in range(4):
            a(f"buffer_load_dwordx4 {q(64+16*n_+4*ks)}, v6, s[{S_WUK}:{S_WUK+3}], s{sT0} offen offset:{64*ks}{nt}")
        if n_ < 3: a(f"s_add_u32 s{sT0}, s{sT0}, {16*8192}")
    make_tag()
    a(f"v_lshlrev_b32 v44, 4, v{vI}\nv_lshl_add_u32 v44, v{vS}, 1, v44\nv_add_u32 v44, {L_QS}, v44")
    a(f"v_and_b32 v45, 3, v{vI}\nv_mul_u32_u24 v45, 272, v45\nv_lshl_add_u32 v45, v{vS}, 4, v45\nv_add_u32 v45, {L_QS}, v45")
    a(f"s_mov_b32 s{sK0}, 0x0504030c\ns_mov_b32 s{sK1}, 0x0403020c")
    a(f"s_lshl_b32 s{sT2}, s{sH}, 14\ns_add_u32 s{sT2}, s{sT2}, {WS_H1}")
    a("s_barrier")
    def h1_loads():
        for jj in range(8):
            a(f"s_add_u32 s{sT0}, s{sT2}, {jj*2048}")
            for t in range(2):
                a(f"buffer_load_dwordx4 {q(128+8*jj+4*t)}, v43, s[{S_WS}:{S_WS+3}], s{sT0} offen offset:{1024*t} sc1")
    h1_loads()
    def fl_load():
        a(f"s_mov_b32 s{sT1}, {WS_FLAGS}")
        a(f"buffer_load_dwordx4 {q(48)}, v43, s[{S_WS}:{S_WS+3}], s{sT1} offen sc1")
    def fl_cmp():
        a(f"v_xor_b32 v4, s{sTAG}, v48")
        for k in range(1, 4): a(f"v_bitop3_b32 v4, v{48+k}, s{sTAG}, v4 bitop3:0xbe")
        a("v_cmp_ne_u32 vcc, 0, v4")
    fl_load()
    a("s_barrier")
    a("s_branch L_h1chk")
    a.label("L_h1retry")
    a("s_sleep 1")
    h1_loads()
    a.label("L_h1chk")
    a("s_waitcnt vmcnt(0)")
    stamp("w1_h1")
    a(f"v_xor_b32 v4, s{sTAG}, v131")
    for k in range(1, 16): a(f"v_bitop3_b32 v4, v{131+4*k}, s{sTAG}, v4 bitop3:0xbe")
    a("v_cmp_ne_u32 vcc, 0, v4\ns_cbranch_vccz L_h1ok")
    spin_check("L_h1retry", 1)
    a.label("L_h1ok")
    for jj in range(8):
        for t in range(2):
            r = 128+8*jj+4*t
            if jj == 0:
                o = 8+4*t
                a(f"v_lshlrev_b32 v{o}, 8, v{r}\nv_perm_b32 v{o+1}, v{r+1}, v{r}, s{sK0}\nv_perm_b32 v{o+2}, v{r+2}, v{r+1}, s{sK1}\nv_and_b32 v{o+3}, 0xffffff00, v{r+2}")
            else:
                o = 16+4*t
                a(f"v_lshlrev_b32 v{o}, 8, v{r}\nv_perm_b32 v{o+1}, v{r+1}, v{r}, s{sK0}\nv_perm_b32 v{o+2}, v{r+2}, v{r+1}, s{sK1}\nv_and_b32 v{o+3}, 0xffffff00, v{r+2}")
                for b in range(4): a(f"v_add_f32 v{8+4*t+b}, v{8+4*t+b}, v{o+b}")
    for t in range(2):
        for bp in range(2):
            a(f"v_cvt_pk_bf16_f32 v{16+2*t+bp}, v{8+4*t+2*bp}, v{8+4*t+2*bp+1}")
    for t in range(2):
        for bp in range(2):
            a(f"ds_write_b16 v44, v{16+2*t+bp} offset:{272*(2*bp)+8*t}")
            a(f"ds_write_b16_d16_hi v44, v{16+2*t+bp} offset:{272*(2*bp+1)+8*t}")
    for ks in range(4): a(f"ds_read_b128 {q(8+4*ks)}, v45 offset:{64*ks}")
    for ks in range(4):
        a(f"s_waitcnt lgkmcnt({3-ks})")
        for n_ in range(4):
            mfma(24+4*n_, 64+16*n_+4*ks, 8+4*ks, "0" if ks == 0 else 24+4*n_)
    for n_ in range(4):
        a(f"s_mov_b64 exec, s[{sM+2*n_}:{sM+2*n_+1}]")
        a(f"v_cvt_pk_bf16_f32 v40, v{24+4*n_}, v{25+4*n_}\nv_cvt_pk_bf16_f32 v41, v{26+4*n_}, v{27+4*n_}")
    a("s_mov_b64 exec, -1")
    a(f"buffer_store_dwordx2 {d(40)}, v42, s[{S_WS}:{S_WS+3}], s{sK3} offen sc1")
    stamp("w1_qapub")
    fl_cmp()
    a("s_cbranch_vccz L_fl1")
    fl_load()
    a.label("L_fl1")
    ckv_issue()
    a("s_waitcnt vmcnt(16)")
    a.label("L_fl2")
    fl_cmp()
    a("s_cbranch_vccz L_fl3")
    a("s_sleep 1")
    fl_load()
    a("s_waitcnt vmcnt(0)")
    spin_check("L_fl2", 6)
    a.label("L_fl3")
    def qa_loads():
        a(f"s_lshl_b32 s{sT0}, s{sB3}, 15\ns_lshr_b32 s{sT1}, s2, 7\ns_lshl_b32 s{sT1}, s{sT1}, 14\ns_add_u32 s{sT0}, s{sT0}, s{sT1}\ns_add_u32 s{sT0}, s{sT0}, {WS_H2}")
        a(f"v_lshlrev_b32 v4, 4, v{vL}")
        for r in range(16):
            a(f"s_mov_b32 m0, {L_QA + r*1024}")
            a(f"s_add_u32 s{sT1}, s{sT0}, {r*1024}")
            a(f"buffer_load_dwordx4 v4, s[{S_WS}:{S_WS+3}], s{sT1} offen sc1 lds")
    qa_loads()
    a("s_branch L_b3")

    a.label("L_not1")
    a(f"s_cmp_ge_u32 s{sW}, 4\ns_cbranch_scc1 L_w47")
    if cfg.b0: a("s_barrier")
    ckv_issue()
    make_tag()
    a(f"v_mov_b32 v4, {L_BAD}\nv_mov_b32 v5, 0\nds_write_b32 v4, v5\ns_waitcnt lgkmcnt(0)")
    a("s_barrier\ns_barrier")
    a("s_branch L_b3")
    a.label("L_w47")
    a(f"s_cmp_lg_u32 s{sW}, 4\ns_cbranch_scc1 L_not4")
    a("v_mov_b32 v8, -1\nv_mov_b32 v9, -1\nv_mov_b32 v10, -1\nv_mov_b32 v11, -1")
    qa_pub_addr()
    if cfg.b0: a("s_barrier")
    a(f"buffer_store_dwordx2 {d(8)}, v42, s[{S_WS}:{S_WS+3}], s{sK3} offen sc1")
    a(f"s_lshl_b32 s{sT0}, s{sB45}, 6\ns_add_u32 s{sT0}, s{sT0}, s{sFS}\ns_lshl_b32 s{sT0}, s{sT0}, 10\ns_add_u32 s{sT1}, s{sT0}, {WS_H4}")
    a(f"buffer_store_dwordx4 {q(8)}, v43, s[{S_WS}:{S_WS+3}], s{sT1} offen sc1")
    a(f"s_add_u32 s{sT1}, s{sT0}, {WS_H5}")
    a(f"buffer_store_dwordx4 {q(8)}, v43, s[{S_WS}:{S_WS+3}], s{sT1} offen sc1")
    make_tag()
    a(f"v_mov_b32 v12, s{sTAG}\nv_mov_b32 v13, 0")
    a(f"s_lshl_b32 s{sT0}, s2, 2\ns_add_u32 s{sT0}, s{sT0}, {WS_FLAGS}")
    a("s_waitcnt vmcnt(0)")
    stamp("w4_rst")
    a("s_mov_b64 exec, 1")
    a(f"buffer_store_dword v12, v13, s[{S_WS}:{S_WS+3}], s{sT0} offen sc1")
    a("s_mov_b64 exec, -1")
    a("s_branch L_nopf")
    a.label("L_not4")
    if cfg.codepf:
        a(f"s_cmp_lg_u32 s{sW}, 7\ns_cbranch_scc1 L_nopf3")
        a(f"s_getpc_b64 s[{sEX}:{sEX+1}]")
        a.label("L_pc")
        a(f"s_sub_u32 s{sEX}, s{sEX}, L_pc-L_code0\ns_subb_u32 s{sEX+1}, s{sEX+1}, 0")
        a(f"s_lshr_b32 s{sT0}, s2, 3\ns_lshl_b32 s{sT0}, s{sT0}, 10")
        a(f"v_lshl_add_u32 v4, v{vL}, 7, s{sT0}")
        a(f"v_cmp_gt_u32 vcc, L_codeend-L_code0, v4")
        a(f"s_and_b64 exec, vcc, 0xff\ns_cbranch_execz L_nopf2")
        a(f"global_load_dword v63, v4, s[{sEX}:{sEX+1}]")
        a.label("L_nopf2")
        a("s_mov_b64 exec, -1")
    a.label("L_nopf3")
    if cfg.b0: a("s_barrier")
    make_tag()
    a.label("L_nopf")
    a("s_barrier\ns_barrier")
    ckv_issue()

    a.label("L_b3")
    if cfg.stamps: a(f"s_mov_b32 s81, s{sCNT}")
    a(f"s_mov_b32 s{sCNT}, 0")
    for kk in range(4):
        a(f"v_add_u32 v4, {4*kk}, v{vS}\nv_xor_b32 v4, v4, v{vI}\nv_lshlrev_b32 v4, 4, v4\nv_lshl_add_u32 v4, v{vI}, 10, v4")
        a(f"v_add_u32 v{20+kk}, {L_QA}, v4")
        a(f"v_lshl_add_u32 v{16+kk}, s{sW}, 14, v4")
    a(f"v_lshrrev_b32 v4, 2, v{vI}\nv_lshlrev_b32 v4, 1, v4\nv_lshl_add_u32 v4, v{vS}, 3, v4")
    a(f"v_bfe_u32 v5, v{vI}, 1, 1\nv_lshl_add_u32 v5, s{sW}, 3, v5")
    a(f"v_and_b32 v6, 15, v4\nv_xor_b32 v5, v5, v6\nv_lshlrev_b32 v5, 4, v5\nv_lshl_add_u32 v4, v4, 10, v5")
    a(f"v_and_b32 v5, 1, v{vI}\nv_lshl_add_u32 v4, v5, 3, v4")
    for t in range(4):
        for aa in range(2):
            a(f"v_xor_b32 v{24+2*t+aa}, {(((2*t)|aa)<<4) | (aa<<10)}, v4")
    a(f"v_lshlrev_b32 v33, 5, v{vI}\nv_add_u32 v33, {L_MAXX}, v33\nv_lshl_add_u32 v32, s{sW}, 2, v33")
    a(f"s_lshr_b32 s{sT0}, s{sW}, 1\ns_lshl_b32 s{sT0}, s{sT0}, 10\ns_and_b32 s{sT1}, s{sW}, 1\ns_lshl_b32 s{sT1}, s{sT1}, 9\ns_add_u32 s{sT0}, s{sT0}, s{sT1}\ns_add_u32 s{sT0}, s{sT0}, {L_PT}")
    a(f"v_lshrrev_b32 v4, 1, v{vS}\nv_lshlrev_b32 v4, 8, v4\nv_lshl_add_u32 v4, v{vI}, 4, v4\nv_and_b32 v5, 1, v{vS}\nv_lshl_add_u32 v4, v5, 2, v4\nv_add_u32 v34, s{sT0}, v4")
    a(f"v_lshlrev_b32 v35, 4, v{vL}\nv_add_u32 v35, {L_PT}, v35")
    a(f"v_lshlrev_b32 v4, 7, v{vI}\nv_lshl_add_u32 v4, v{vS}, 2, v4\nv_lshl_add_u32 v4, s{sW}, 4, v4\nv_add_u32 v36, {L_LS}, v4")
    a(f"v_lshlrev_b32 v4, 17, v{vI}\nv_lshl_add_u32 v4, v{vS}, 4, v4\nv_lshl_add_u32 v37, s{sW}, 7, v4")
    a(f"v_mov_b32 v38, {L_BAD}")
    import math
    cc = math.log2(math.e) if cfg.sround else math.log2(math.e) * 128 ** -0.5
    a(f"s_mov_b32 s{sC}, {f2u(cc)}")
    a(f"s_lshl_b32 s{sT0}, s{sB45}, 7")
    a(f"v_add_u32 v4, s{sT0}, v{vL}\nv_lshlrev_b32 v4, 13, v4\nv_lshl_add_u32 v39, s{sFS}, 7, v4")
    a(f"s_lshl_b32 s{sT0}, s{sFS}, 16\ns_lshl_b32 s{sT2}, s{sB45}, 14\ns_add_u32 s{sT0}, s{sT0}, s{sT2}")
    a(f"v_lshl_add_u32 v40, v{vL}, 7, s{sT0}")
    a(f"s_and_b32 s{sT0}, s{sW}, 6\ns_cmp_lg_u32 s{sT0}, 2\ns_cbranch_scc1 L_b3o")
    a("s_waitcnt vmcnt(0)")
    a("s_barrier")
    if cfg.prefetch45:
        a(f"s_and_b32 s{sT0}, s{sW}, 1\ns_lshl_b32 s{sT1}, s{sT0}, 19\ns_lshl_b32 s{sT0}, s{sT0}, 13")
        a(f"buffer_load_dword v41, v39, s[{S_WUV}:{S_WUV+3}], s{sT1} offen{nt}")
        a(f"buffer_load_dword v41, v40, s[{S_WO}:{S_WO+3}], s{sT0} offen{nt}")
    a("s_branch L_b3j")
    a.label("L_b3o")
    a("s_barrier")
    stamp("b3")
    a("s_waitcnt vmcnt(0)")
    a.label("L_b3j")
    stamp("ckv")
    for ks in range(16): a(f"ds_read_b128 {q(64+4*ks)}, v{16+(ks&3)} offset:{(ks>>2)*256}")
    a.label("L_nofl")
    a("s_waitcnt lgkmcnt(0)")
    a("s_barrier")
    stamp("b4")
    for ks in range(16): a(f"ds_read_b128 {q(128+4*ks)}, v{20+(ks&3)} offset:{(ks>>2)*256}")
    for ks in range(16):
        a(f"s_waitcnt lgkmcnt({15-ks})")
        mfma(8, 64+4*ks, 128+4*ks, "0" if ks == 0 else 8)
    trl = [(kk, t, aa) for kk in range(4) for t in range(4) for aa in range(2)]
    def tr_reads(lo, hi):
        for (kk, t, aa) in trl[lo:hi]:
            if kk == 2 and t == 0 and aa == 0:
                for k in range(8): a(f"v_add_u32 v{24+k}, 0x10000, v{24+k}")
            a(f"ds_read_b64_tr_b16 {d(192+16*kk+4*t+2*aa)}, v{24+2*t+aa} offset:{(kk&1)*32768}")
    a("v_cmp_u_f32 vcc, v8, v8\ns_cbranch_vccz L_sok")
    a("v_mov_b32 v4, 1\nds_write_b32 v38, v4")
    a.label("L_sok")
    if cfg.sround:
        a("v_cvt_pk_bf16_f32 v4, v8, v9\nv_cvt_pk_bf16_f32 v5, v10, v11")
        a("v_lshlrev_b32 v8, 16, v4\nv_and_b32 v9, 0xffff0000, v4\nv_lshlrev_b32 v10, 16, v5\nv_and_b32 v11, 0xffff0000, v5")
        for k in range(4): a(f"v_mul_f32 v{8+k}, {f2u(128 ** -0.5)}, v{8+k}")
        a("v_cvt_pk_bf16_f32 v4, v8, v9\nv_cvt_pk_bf16_f32 v5, v10, v11")
        a("v_lshlrev_b32 v8, 16, v4\nv_and_b32 v9, 0xffff0000, v4\nv_lshlrev_b32 v10, 16, v5\nv_and_b32 v11, 0xffff0000, v5")
    a("v_max3_f32 v12, v8, v9, v10\nv_max_f32 v12, v12, v11")
    swapred("v_max_f32", (12,), (13,), 16)
    swapred("v_max_f32", (12,), (13,), 32)
    a("ds_write_b32 v32, v12")
    tr_reads(0, 12)
    a("s_waitcnt lgkmcnt(12)")
    a("s_barrier")
    stamp("b5")
    a(f"ds_read_b128 {q(64)}, v33\nds_read_b128 {q(68)}, v33 offset:16\nds_read_b32 v72, v38")
    tr_reads(12, 24)
    a("s_waitcnt lgkmcnt(12)")
    a(f"v_readfirstlane_b32 s{sT0}, v72")
    a("v_max3_f32 v12, v64, v65, v66\nv_max3_f32 v13, v67, v68, v69\nv_max3_f32 v12, v12, v70, v71\nv_max_f32 v12, v12, v13")
    a(f"s_cmp_lg_u32 s{sT0}, 0\ns_cbranch_scc1 L_h2retry")
    a.label("L_h2ok")
    a(f"v_mul_f32 v12, s{sC}, v12")
    for k in range(4): a(f"v_fma_f32 v{8+k}, v{8+k}, s{sC}, -v12")
    for k in range(4): a(f"v_exp_f32 v{8+k}, v{8+k}")
    a("v_cvt_pk_bf16_f32 v4, v8, v10\nv_cvt_pk_bf16_f32 v5, v9, v11")
    a("v_add_f32 v8, v8, v9\nv_add_f32 v10, v10, v11\nv_add_f32 v8, v8, v10")
    a("ds_write2_b32 v34, v4, v5 offset0:0 offset1:2\nds_write_b32 v36, v8")
    tr_reads(24, 32)
    a("s_waitcnt lgkmcnt(8)")
    a("s_barrier")
    stamp("b6")
    for kk in range(4): a(f"ds_read_b128 {q(64+4*kk)}, v35 offset:{kk*1024}")
    a(f"s_lshr_b32 s{sT0}, s2, 7\ns_lshl_b32 s{sT0}, s{sT0}, 21\ns_and_b32 s{sT1}, s2, 127\ns_lshl_b32 s{sT1}, s{sT1}, 10\ns_add_u32 s{sT0}, s{sT0}, s{sT1}\ns_add_u32 s{sT0}, s{sT0}, {WS_O}")
    for kk in range(4):
        a(f"s_waitcnt lgkmcnt({3-kk})")
        for t in range(4):
            mfma(80+4*t, 192+16*kk+4*t, 64+4*kk, "0" if kk == 0 else 80+4*t)
    for tp in range(2):
        for u in range(2):
            r = 80+4*(2*tp+u)
            a(f"v_cvt_pk_bf16_f32 v{96+4*tp+2*u}, v{r}, v{r+1}\nv_cvt_pk_bf16_f32 v{97+4*tp+2*u}, v{r+2}, v{r+3}")
        a(f"buffer_store_dwordx4 {q(96+4*tp)}, v37, s[{S_WS}:{S_WS+3}], s{sT0} offen offset:{64*tp} sc1")
    stamp("ost")
    a("v_bitop3_b32 v4, v96, v97, v98 bitop3:0x96\nv_bitop3_b32 v5, v99, v100, v101 bitop3:0x96\nv_bitop3_b32 v4, v4, v102, v103 bitop3:0x96\nv_xor_b32 v4, v4, v5")
    a(f"ds_write_b32 v36, v4 offset:{L_CK-L_LS}")
    a("s_waitcnt lgkmcnt(0)")
    a("s_barrier")
    a(f"s_cmp_ge_u32 s{sW}, 4\ns_cbranch_scc1 L_p45b")
    a(f"s_cmp_lg_u32 s{sW}, 0\ns_cbranch_scc1 L_norec")
    a(f"v_lshlrev_b32 v4, 7, v{vI}\nv_lshl_add_u32 v4, v{vS}, 5, v4\nv_add_u32 v4, {L_LS}, v4")
    a(f"ds_read_b128 {q(64)}, v4\nds_read_b128 {q(68)}, v4 offset:16\nds_read_b128 {q(72)}, v4 offset:{L_CK-L_LS}\nds_read_b128 {q(76)}, v4 offset:{L_CK-L_LS+16}")
    a(f"s_and_b32 s{sT0}, s2, 127\ns_lshl_b32 s{sT0}, s{sT0}, 1\ns_lshr_b32 s{sT1}, s2, 7\ns_add_u32 s{sT0}, s{sT0}, s{sT1}\ns_lshl_b32 s{sT0}, s{sT0}, 8\ns_add_u32 s{sT0}, s{sT0}, {WS_REC}")
    a(f"v_lshlrev_b32 v4, 4, v{vL}\nv_mov_b32 v15, s{sTAG}")
    a("s_waitcnt lgkmcnt(2)")
    a("v_add_f32 v64, v64, v65\nv_add_f32 v66, v66, v67\nv_add_f32 v68, v68, v69\nv_add_f32 v70, v70, v71\nv_add_f32 v64, v64, v66\nv_add_f32 v68, v68, v70\nv_add_f32 v13, v64, v68")
    a("s_waitcnt lgkmcnt(0)")
    a("v_bitop3_b32 v72, v72, v73, v74 bitop3:0x96\nv_bitop3_b32 v75, v75, v76, v77 bitop3:0x96\nv_bitop3_b32 v72, v72, v78, v79 bitop3:0x96\nv_xor_b32 v14, v72, v75")
    for wh in (16, 32):
        a(f"v_mov_b32 v5, v13\nv_mov_b32 v6, v14\nv_permlane{wh}_swap_b32 v13, v5\nv_permlane{wh}_swap_b32 v14, v6\nv_add_f32 v13, v13, v5\nv_xor_b32 v14, v14, v6")
    a("v_bitop3_b32 v14, v14, v12, v13 bitop3:0x96")
    a("s_mov_b64 exec, 0xffff")
    a(f"buffer_store_dwordx4 {q(12)}, v4, s[{S_WS}:{S_WS+3}], s{sT0} offen sc1")
    a("s_mov_b64 exec, -1")
    a.label("L_norec")
    a(f"v_lshlrev_b32 v6, 13, v{vS}\nv_lshl_add_u32 v6, v{vI}, 4, v6")
    a(f"s_lshl_b32 s{sT0}, s{sFS}, 16\ns_lshl_b32 s{sT1}, s{sW}, 8\ns_add_u32 s{sT0}, s{sT0}, s{sT1}")
    for ks in range(2):
        for r4 in range(2):
            a(f"s_add_u32 s{sT1}, s{sT0}, {(32*ks+4*r4)*1024}")
            for r in range(4):
                a(f"buffer_load_dwordx4 {q(128+32*ks+16*r4+4*r)}, v6, s[{S_WO}:{S_WO+3}], s{sT1} offen offset:{1024*r}{nt}")
    a("s_waitcnt vmcnt(16)")
    stamp("drain")
    a("s_barrier")
    stamp("b8")
    a(f"v_and_b32 v4, 7, v{vI}\nv_lshlrev_b32 v4, 8, v4\nv_lshrrev_b32 v5, 3, v{vI}\nv_lshl_add_u32 v4, v5, 7, v4\nv_lshl_add_u32 v4, v{vS}, 5, v4\nv_add_u32 v16, {L_CP}, v4")
    a(f"v_mov_b32 v17, {L_VAL}\nv_lshlrev_b32 v18, 4, v{vL}")
    a("s_waitcnt vmcnt(8)")
    transpose(128, 192)
    a("s_waitcnt vmcnt(0)")
    transpose(160, 128)
    stamp("wo")
    a(f"s_cmp_ge_u32 s{sH}, 28\ns_cbranch_scc1 L_nogu")
    a(f"v_lshrrev_b32 v4, 2, v{vI}\nv_lshlrev_b32 v4, 2, v4\nv_add_u32 v4, v4, v{vS}\nv_mul_u32_u24 v4, {8*3584}, v4\nv_and_b32 v5, 3, v{vI}\nv_lshl_add_u32 v6, v5, 4, v4")
    a(f"s_lshr_b32 s{sT0}, s{sW}, 1\ns_mul_i32 s{sT0}, s{sT0}, {256*3584}\ns_lshl_b32 s{sT1}, s{sFS}, 6\ns_add_u32 s{sT0}, s{sT0}, s{sT1}")
    for gg in range(2):
        for r in range(8):
            a(f"s_add_u32 s{sT1}, s{sT0}, {(128*gg+r)*3584}")
            a(f"buffer_load_dwordx4 {q((160 if gg == 0 else 224)+4*r)}, v6, s[{S_WGU}:{S_WGU+3}], s{sT1} offen{nt}")
    a.label("L_nogu")
    a(f"s_lshl_b32 s{sK3}, s{sB45}, 6\ns_add_u32 s{sK3}, s{sK3}, s{sFS}\ns_lshl_b32 s{sK3}, s{sK3}, 10\ns_lshl_b32 s{sT1}, s{sW}, 8\ns_add_u32 s{sK3}, s{sK3}, s{sT1}")
    a(f"s_add_u32 s{sK2}, s{sK3}, {WS_H4}")
    a.label("L_b10a")
    a("s_barrier")
    a(f"ds_read_b128 {q(20)}, v17\nds_read_b128 {q(8)}, v16\nds_read_b128 {q(12)}, v16 offset:16")
    a("s_waitcnt lgkmcnt(2)")
    a("v_bitop3_b32 v20, v20, v21, v22 bitop3:0x96\nv_cmp_ne_u32 vcc, v20, v23\ns_cbranch_vccz L_h3oka")
    a(f"s_add_u32 s{sCNT}, s{sCNT}, 1\ns_cmp_ge_u32 s{sCNT}, {SPIN}\ns_cbranch_scc1 L_h3oka")
    a("s_waitcnt lgkmcnt(0)\ns_barrier\ns_branch L_b10a")
    a.label("L_h3oka")
    stamp("b10")
    a("s_waitcnt lgkmcnt(0)")
    for c in ("quad_perm:[1,0,3,2]", "quad_perm:[2,3,0,1]", "row_half_mirror"):
        for k in range(8): dpp("v_add_f32", 8+k, 8+k, 8+k, c)
    for k in range(4): a(f"v_cvt_pk_bf16_f32 v{20+k}, v{8+2*k}, v{9+2*k}")
    for k in range(4): a(f"v_mov_b32_dpp v{24+k}, v{20+k} row_ror:8 row_mask:0xf bank_mask:0xf")
    for ks in range(2):
        for i in range(8):
            mfma(64+4*i, 20+4*ks, (192 if ks == 0 else 128)+4*i, "0" if ks == 0 else 64+4*i)
    for k in range(4): a(f"v_cvt_pk_bf16_f32 v{8+k}, v{64+8*k}, v{68+8*k}")
    a("s_mov_b64 exec, 0xffff")
    a(f"buffer_store_dwordx4 {q(8)}, v18, s[{S_WS}:{S_WS+3}], s{sK2} offen sc1")
    a("s_mov_b64 exec, -1")
    stamp("h4pub")
    a(f"s_cmp_ge_u32 s{sH}, 28\ns_cbranch_scc1 L_fin")
    a("s_waitcnt vmcnt(0)")
    a("s_branch L_b11")

    a.label("L_p45b")
    a(f"s_and_b32 s{sK0}, s{sW}, 3")
    a(f"v_lshrrev_b32 v4, 3, v{vI}\nv_lshlrev_b32 v4, 3, v4\nv_add_u32 v4, v4, v{vS}\nv_lshlrev_b32 v4, 15, v4\nv_and_b32 v5, 7, v{vI}\nv_lshl_add_u32 v6, v5, 4, v4")
    a(f"s_lshl_b32 s{sT0}, s{sK0}, 20\ns_lshl_b32 s{sT1}, s{sFS}, 7\ns_add_u32 s{sT0}, s{sT0}, s{sT1}")
    for gg in range(2):
        for r in range(8):
            a(f"s_add_u32 s{sT1}, s{sT0}, {(64*gg+16*(r>>2)+(r&3))*8192}")
            a(f"buffer_load_dwordx4 {q(128+32*gg+4*r)}, v6, s[{S_WUV}:{S_WUV+3}], s{sT1} offen{nt}")
    a(f"v_lshlrev_b32 v16, 10, v{vS}\nv_lshl_add_u32 v16, v{vI}, 4, v16")
    a(f"v_and_b32 v4, 7, v{vI}\nv_lshl_add_u32 v4, v4, 2, v{vS}\nv_lshlrev_b32 v17, 9, v4")
    a(f"s_lshl_b32 s{sK1}, s{sH}, 2\ns_add_u32 s{sK1}, s{sK1}, s{sB45}\ns_lshl_b32 s{sK1}, s{sK1}, 15\ns_lshl_b32 s{sT1}, s{sK0}, 8\ns_add_u32 s{sK1}, s{sK1}, s{sT1}\ns_add_u32 s{sK1}, s{sK1}, {WS_O}")
    a(f"s_lshl_b32 s{sK2}, s{sB45}, 14\ns_lshl_b32 s{sT1}, s{sH}, 4\ns_add_u32 s{sK2}, s{sK2}, s{sT1}\ns_add_u32 s{sK2}, s{sK2}, {WS_REC}")
    def h3_loads():
        a(f"buffer_load_dwordx4 {q(96)}, v17, s[{S_WS}:{S_WS+3}], s{sK2} offen sc1")
        for t in range(8):
            a(f"s_add_u32 s{sT1}, s{sK1}, {t*4096}")
            a(f"buffer_load_dwordx4 {q(64+4*t)}, v16, s[{S_WS}:{S_WS+3}], s{sT1} offen sc1")
    a("s_waitcnt vmcnt(16)")
    stamp("drain")
    a("s_barrier")
    stamp("b8")
    h3_loads()
    stamp("h3iss")
    a(f"v_lshlrev_b32 v6, 13, v{vS}\nv_lshl_add_u32 v6, v{vI}, 4, v6")
    a(f"s_lshl_b32 s{sT0}, s{sFS}, 15\ns_lshl_b32 s{sT1}, s{sK0}, 8\ns_add_u32 s{sT0}, s{sT0}, s{sT1}")
    for r4 in range(2):
        for r in range(4):
            a(f"buffer_load_dwordx4 {q(224+16*r4+4*r)}, v6, s[{S_WD}:{S_WD+3}], s{sT0} offen offset:{1024*r}{nt}")
        if r4 == 0: a(f"s_add_u32 s{sT0}, s{sT0}, 4096")
    a(f"v_and_b32 v4, 1, v{vI}\nv_lshlrev_b32 v4, 4, v4\nv_mov_b32 v5, 0xffff\nv_lshlrev_b32 v4, v4, v5\nv_bfe_u32 v5, v{vI}, 1, 2")
    for k in range(4): a(f"v_cmp_eq_u32 vcc, {k}, v5\nv_cndmask_b32 v{12+k}, 0, v4, vcc")
    a(f"s_lshl_b32 s{sT0}, s{sK0}, 8\ns_add_u32 s{sT0}, s{sT0}, {L_CS}")
    a(f"v_and_b32 v4, 1, v{vS}\nv_lshlrev_b32 v4, 3, v4\nv_lshl_add_u32 v4, v{vI}, 4, v4\nv_add_u32 v18, s{sT0}, v4")
    a(f"v_and_b32 v4, 4, v{vI}\nv_add_u32 v4, v4, v{vS}\nv_lshl_add_u32 v19, v4, 4, s{sT0}")
    a(f"s_lshl_b32 s{sT0}, s{sK0}, 9\ns_add_u32 s{sT0}, s{sT0}, {L_CP}")
    a(f"v_lshrrev_b32 v4, 3, v{vI}\nv_lshlrev_b32 v4, 8, v4\nv_and_b32 v5, 7, v{vI}\nv_lshl_add_u32 v4, v5, 5, v4\nv_lshrrev_b32 v5, 1, v{vS}\nv_lshl_add_u32 v4, v5, 4, v4\nv_add_u32 v20, s{sT0}, v4")
    a(f"v_mov_b32 v22, {L_VAL}\nv_lshl_add_u32 v21, s{sK0}, 2, v22")
    stamp("dniss")
    a("s_waitcnt vmcnt(25)")
    stamp("wuv0")
    transpose(128, 192)
    a("s_waitcnt vmcnt(17)")
    transpose(160, 128)
    stamp("wuv")
    a("s_waitcnt vmcnt(16)")
    stamp("rec")
    a.label("L_h3calc")
    a("v_mov_b32 v24, v96")
    for c in ("quad_perm:[1,0,3,2]", "quad_perm:[2,3,0,1]", "row_half_mirror"): dpp("v_max_f32", 24, 24, 24, c)
    a(f"v_bitop3_b32 v26, v96, v97, v98 bitop3:0x96\nv_xor_b32 v27, s{sTAG}, v99")
    swapred("v_max_f32", (24,), (25,), 16)
    swapred("v_max_f32", (24,), (25,), 32)
    a("v_sub_f32 v24, v96, v24\nv_exp_f32 v24, v24\nv_cmp_ne_u32 vcc, 0, v27\nv_mul_f32 v25, v24, v97")
    a(f"s_cmp_lg_u64 vcc, 0\ns_cselect_b32 s{sT2}, 1, 0")
    for c in ("quad_perm:[1,0,3,2]", "quad_perm:[2,3,0,1]", "row_half_mirror"): dpp("v_add_f32", 25, 25, 25, c)
    swapred("v_add_f32", (25,), (27,), 16)
    swapred("v_add_f32", (25,), (27,), 32)
    a("v_rcp_f32 v25, v25\nv_mul_f32 v24, v24, v25\nv_cvt_pk_bf16_f32 v24, v24, v24")
    a(f"s_cmp_eq_u32 s{sK0}, 0\ns_cselect_b32 s{sEX}, 0x00ff00ff, 0\ns_mov_b32 s{sEX+1}, s{sEX}")
    a(f"v_cndmask_b32 v26, 0, v26, s[{sEX}:{sEX+1}]")
    for t in range(8):
        o = 100 + 4*(t&1)
        for k in range(4): a(f"v_and_b32_dpp v{o+k}, v24, v{12+k} row_newbcast:{t} row_mask:0xf bank_mask:0xf")
        a(f"s_waitcnt vmcnt({15-t})")
        mfma(8, o, 64+4*t, "0" if t == 0 else 8)
        a(f"v_bitop3_b32 v26, v26, v{64+4*t}, v{65+4*t} bitop3:0x96\nv_bitop3_b32 v26, v26, v{66+4*t}, v{67+4*t} bitop3:0x96")
    stamp("comb")
    a("v_cvt_pk_bf16_f32 v4, v8, v9\nv_cvt_pk_bf16_f32 v5, v10, v11")
    a(f"ds_write_b64 v18, {d(4)}")
    a(f"ds_read_b128 {q(100)}, v19\nds_read_b128 {q(104)}, v19 offset:128")
    for c in ("quad_perm:[1,0,3,2]", "quad_perm:[2,3,0,1]", "row_half_mirror", "row_mirror"): dpp("v_xor_b32", 26, 26, 26, c)
    for gg in range(2):
        a(f"s_waitcnt lgkmcnt({1-gg})")
        for i in range(8):
            mfma(64+4*i, 100+4*gg, (192 if gg == 0 else 128)+4*i, "0" if gg == 0 else 64+4*i)
        swapred("v_xor_b32", (26,), (27,), 16 if gg == 0 else 32)
    a(f"s_mul_i32 s{sT2}, s{sT2}, 0x5bd1e995\ns_lshl_b32 s{sT2}, s{sT2}, s{sK0}\nv_mov_b32 v27, s{sT2}\nv_cmp_eq_u32 vcc, 0, v27\nv_cndmask_b32 v26, v27, v26, vcc")
    a("ds_write_b32 v21, v26")
    a(f"s_mov_b32 s{sEX}, 0\ns_mov_b32 s{sEX+1}, -1")
    for k in range(4): a(f"v_cndmask_b32 v{8+k}, v{64+4*k}, v{80+4*k}, s[{sEX}:{sEX+1}]")
    a("s_mov_b32 exec_lo, 0xff0000ff\ns_mov_b32 exec_hi, 0xff0000ff")
    a(f"ds_write_b128 v20, {q(8)}")
    a("s_mov_b64 exec, -1")
    a("s_waitcnt lgkmcnt(0)")
    a("s_barrier")
    a(f"ds_read_b128 {q(28)}, v22")
    a("s_waitcnt lgkmcnt(0)")
    a("v_bitop3_b32 v28, v28, v29, v30 bitop3:0x96\nv_cmp_ne_u32 vcc, v28, v31\ns_cbranch_vccz L_h3okb")
    a(f"s_add_u32 s{sCNT}, s{sCNT}, 1\ns_cmp_ge_u32 s{sCNT}, {SPIN}\ns_cbranch_scc1 L_h3fail")
    a("s_barrier\ns_sleep 1")
    h3_loads()
    a("s_waitcnt vmcnt(0)\ns_branch L_h3calc")
    a.label("L_h3fail")
    a(f"v_mov_b32 v4, 3\nv_mov_b32 v5, 0\nbuffer_store_dword v4, v5, s[{S_DBG}:{S_DBG+3}], 0 offen offset:12")
    a.label("L_h3okb")
    a(f"s_cmp_ge_u32 s{sH}, 28\ns_cbranch_scc1 L_fin")
    a("s_waitcnt vmcnt(0)")
    transpose(224, 128)

    a.label("L_b11")
    a(f"v_lshlrev_b32 v16, 10, v{vS}\nv_lshl_add_u32 v16, v{vI}, 4, v16")
    a(f"s_and_b32 s{sK0}, s{sW}, 3\ns_lshr_b32 s{sK1}, s{sW}, 2")
    a(f"s_lshl_b32 s{sK2}, s{sB45}, 16\ns_lshl_b32 s{sT1}, s{sK1}, 15\ns_add_u32 s{sK2}, s{sK2}, s{sT1}\ns_lshl_b32 s{sT1}, s{sK0}, 8\ns_add_u32 s{sK2}, s{sK2}, s{sT1}\ns_add_u32 s{sK2}, s{sK2}, {WS_H4}")
    a(f"v_lshlrev_b32 v17, 4, v{vL}\ns_lshl_b32 s{sT2}, s{sB45}, 10")
    def h4_loads():
        for t in range(8):
            a(f"s_add_u32 s{sT1}, s{sK2}, {t*4096}")
            a(f"buffer_load_dwordx4 {q(64+4*t)}, v16, s[{S_WS}:{S_WS+3}], s{sT1} offen sc1")
    a("s_barrier")
    stamp("b11")
    a(f"buffer_load_dwordx4 {q(96)}, v17, s[{S_X}:{S_X+3}], s{sT2} offen")
    h4_loads()
    a(f"v_and_b32 v4, 1, v{vI}\nv_lshlrev_b32 v4, 4, v4\nv_mov_b32 v5, 0x3f80\nv_lshlrev_b32 v4, v4, v5\nv_bfe_u32 v5, v{vI}, 1, 2")
    for k in range(4): a(f"v_cmp_eq_u32 vcc, {k}, v5\nv_cndmask_b32 v{12+k}, 0, v4, vcc")
    a(f"s_lshl_b32 s{sT0}, s{sK1}, 11\ns_lshl_b32 s{sT1}, s{sK0}, 9\ns_add_u32 s{sT0}, s{sT0}, s{sT1}\ns_add_u32 s{sT0}, s{sT0}, {L_AP}")
    a(f"v_and_b32 v4, 1, v{vS}\nv_lshlrev_b32 v4, 4, v4\nv_lshl_add_u32 v4, v{vI}, 5, v4\nv_add_u32 v18, s{sT0}, v4")
    a(f"v_lshlrev_b32 v19, 5, v{vL}\nv_mov_b32 v20, {L_RETRY}")
    a(f"s_cmp_ge_u32 s{sW}, 4\ns_cbranch_scc1 L_f47")
    transpose(160, 128)
    transpose(224, 192)
    a(f"s_lshr_b32 s{sT0}, s{sW}, 1\ns_lshl_b32 s{sT1}, s{sT0}, 7")
    a(f"v_and_b32 v4, 12, v{vI}\nv_add_u32 v4, v4, v{vS}\nv_lshl_add_u32 v21, v4, 2, s{sT1}")
    a(f"s_lshl_b32 s{sT0}, s{sT0}, 10\ns_and_b32 s{sT1}, s{sW}, 1\ns_lshl_b32 s{sT1}, s{sT1}, 7\ns_add_u32 s{sT0}, s{sT0}, s{sT1}\ns_add_u32 s{sT0}, s{sT0}, {L_GP}")
    a(f"v_and_b32 v4, 3, v{vI}\nv_lshlrev_b32 v4, 5, v4\nv_lshl_add_u32 v4, v{vS}, 8, v4\nv_add_u32 v22, s{sT0}, v4")
    a(f"v_add_u32 v23, {L_HS}, v17")
    a(f"s_mov_b32 s{sK3}, 0x3f803f80")
    a("s_waitcnt vmcnt(8)")
    for k in range(4): a(f"v_lshlrev_b32 v{108+2*k}, 16, v{96+k}\nv_and_b32 v{109+2*k}, 0xffff0000, v{96+k}")
    def h4_reduce():
        for t in range(8):
            a(f"s_waitcnt vmcnt({7-t})")
            mfma(8, 12, 64+4*t, "0" if t == 0 else 8)
        a(f"ds_write_b128 v18, {q(8)}")
        a("s_waitcnt lgkmcnt(0)")
    a.label("L_h4a")
    h4_reduce()
    stamp("h4red")
    a("s_barrier")
    a(f"ds_read_b128 {q(24)}, v19 offset:{L_AP}\nds_read_b128 {q(28)}, v19 offset:{L_AP+16}\nds_read_b128 {q(32)}, v19 offset:{L_AP+2048}\nds_read_b128 {q(36)}, v19 offset:{L_AP+2064}")
    a("s_waitcnt lgkmcnt(0)")
    for k in range(8): a(f"v_add_f32 v{24+k}, v{24+k}, v{32+k}")
    for k in range(4): a(f"v_cvt_pk_bf16_f32 v{32+k}, v{24+2*k}, v{25+2*k}")
    for k in range(4): a(f"v_lshlrev_b32 v{24+2*k}, 16, v{32+k}\nv_and_b32 v{25+2*k}, 0xffff0000, v{32+k}")
    for k in range(8): a(f"v_add_f32 v{24+k}, v{24+k}, v{108+k}")
    for k in range(4): a(f"v_cvt_pk_bf16_f32 v{32+k}, v{24+2*k}, v{25+2*k}")
    a(f"v_dot2_f32_bf16 v40, v32, s{sK3}, 0\nv_dot2_f32_bf16 v41, v32, v32, 0")
    for k in range(1, 4): a(f"v_dot2_f32_bf16 v40, v{32+k}, s{sK3}, v40\nv_dot2_f32_bf16 v41, v{32+k}, v{32+k}, v41")
    a(f"ds_write_b128 v23, {q(32)}")
    for c in ("quad_perm:[1,0,3,2]", "quad_perm:[2,3,0,1]", "row_half_mirror", "row_mirror"):
        dpp("v_add_f32", 40, 40, 40, c); dpp("v_add_f32", 41, 41, 41, c)
    swapred("v_add_f32", (40, 41), (42, 43), 16)
    swapred("v_add_f32", (40, 41), (42, 43), 32)
    a("v_cmp_u_f32 vcc, v40, v40\ns_cbranch_vccz L_h4ok")
    a(f"s_add_u32 s{sCNT}, s{sCNT}, 1\ns_cmp_ge_u32 s{sCNT}, {SPIN}\ns_cbranch_scc1 L_h4fail")
    a("v_mov_b32 v4, 1\nds_write_b32 v20, v4\ns_waitcnt lgkmcnt(0)\ns_barrier\ns_sleep 1")
    h4_loads()
    a("s_branch L_h4a")
    a.label("L_h4fail")
    a(f"v_mov_b32 v4, 4\nv_mov_b32 v5, 0\nbuffer_store_dword v4, v5, s[{S_DBG}:{S_DBG+3}], 0 offen offset:16")
    a.label("L_h4ok")
    stamp("h4ok")
    ln_stats(40, 41, 42)
    ln_apply(32, 4, 40, 41, 24)
    for gg in range(2):
        for k in range(4): a(f"ds_bpermute_b32 v{100+4*gg+k}, v21, v{32+k} offset:{64*gg}")
    a("v_mov_b32 v4, 0\nds_write_b32 v20, v4")
    for gg in range(2):
        a(f"s_waitcnt lgkmcnt({5-4*gg})")
        for i in range(8):
            mfma(64+4*i, 100+4*gg, (128 if gg == 0 else 192)+4*i, "0" if gg == 0 else 64+4*i)
    a("s_mov_b32 exec_lo, 0x00f0000f\ns_mov_b32 exec_hi, 0xf0000f00")
    for k in range(4): a(f"ds_write2_b32 v22, v{64+8*k}, v{68+8*k} offset0:{2*k} offset1:{2*k+1}")
    a("s_waitcnt lgkmcnt(0)")
    a("s_barrier")
    a("s_branch L_fin")
    a.label("L_f47")
    a(f"v_lshlrev_b32 v21, 2, v{vL}")
    a(f"s_lshl_b32 s{sT0}, s{sK0}, 6\ns_add_u32 s{sT0}, s{sT0}, {L_AS}")
    a(f"v_and_b32 v4, 31, v{vL}\nv_lshl_add_u32 v22, v4, 1, s{sT0}\nv_lshl_add_u32 v23, v{vS}, 4, s{sT0}")
    a(f"s_lshl_b32 s{sK3}, s{sB45}, 6\ns_add_u32 s{sK3}, s{sK3}, s{sFS}\ns_lshl_b32 s{sK3}, s{sK3}, 10\ns_lshl_b32 s{sT1}, s{sK0}, 8\ns_add_u32 s{sK3}, s{sK3}, s{sT1}\ns_add_u32 s{sK3}, s{sK3}, {WS_H5}")
    a.label("L_h4b")
    h4_reduce()
    a("s_barrier")
    a("s_barrier")
    a("ds_read_b32 v4, v20")
    for p in range(8): a(f"ds_read_b32 v{24+p}, v21 offset:{L_GP+256*p}")
    a("s_waitcnt lgkmcnt(8)")
    a(f"v_readfirstlane_b32 s{sT0}, v4\ns_cmp_eq_u32 s{sT0}, 0\ns_cbranch_scc1 L_h4okb")
    a("s_waitcnt lgkmcnt(0)\ns_sleep 1")
    h4_loads()
    a("s_branch L_h4b")
    a.label("L_h4okb")
    stamp("b13")
    a("s_waitcnt lgkmcnt(0)")
    a("v_add_f32 v24, v24, v25\nv_add_f32 v26, v26, v27\nv_add_f32 v28, v28, v29\nv_add_f32 v30, v30, v31\nv_add_f32 v24, v24, v26\nv_add_f32 v28, v28, v30\nv_add_f32 v24, v24, v28")
    bfround(24, 24)
    a("v_mov_b32 v25, v24\nv_permlane32_swap_b32 v24, v25")
    k1 = -2.0 * math.sqrt(2.0/math.pi) * math.log2(math.e)
    a(f"v_mul_f32 v26, v24, v24\nv_mov_b32 v27, {f2u(k1)}\nv_fmamk_f32 v26, v26, {f2u(k1*0.044715)}, v27\nv_mul_f32 v26, v26, v24")
    a("v_exp_f32 v26, v26\nv_add_f32 v26, 1.0, v26\nv_rcp_f32 v26, v26\nv_mul_f32 v26, v26, v24")
    bfround(26, 26)
    a("v_mul_f32 v26, v26, v25\nv_cvt_pk_bf16_f32 v26, v26, v26")
    a(f"ds_write_b16 v22, v26\nds_read_b128 {q(28)}, v23")
    a("s_waitcnt lgkmcnt(0)")
    for i in range(8): mfma(64+4*i, 28, 128+4*i, "0")
    for k in range(4): a(f"v_cvt_pk_bf16_f32 v{8+k}, v{64+8*k}, v{68+8*k}")
    a("s_mov_b64 exec, 0xffff")
    a(f"buffer_store_dwordx4 {q(8)}, v17, s[{S_WS}:{S_WS+3}], s{sK3} offen sc1")
    a("s_mov_b64 exec, -1")
    stamp("h5pub")
    a(f"s_cmp_ge_u32 s{sFS}, 8\ns_cbranch_scc1 L_fin")
    a(f"s_cmp_lg_u32 s{sW}, 4\ns_cbranch_scc1 L_fin")
    a(f"v_lshrrev_b32 v4, 3, v{vI}\nv_lshl_add_u32 v4, v{vS}, 1, v4\nv_lshlrev_b32 v4, 10, v4\nv_and_b32 v5, 7, v{vI}\nv_lshl_add_u32 v16, v5, 4, v4")
    a(f"s_lshl_b32 s{sK2}, s{sB45}, 16\ns_lshl_b32 s{sT1}, s{sFS}, 7\ns_add_u32 s{sK2}, s{sK2}, s{sT1}\ns_add_u32 s{sK2}, s{sK2}, {WS_H5}")
    a(f"v_and_b32 v4, 1, v{vS}\nv_lshlrev_b32 v4, 3, v4\nv_lshl_add_u32 v18, v5, 4, v4\ns_add_u32 s{sT0}, s{sT1}, {L_HS}\nv_add_u32 v19, s{sT0}, v18")
    a(f"ds_read_b64 {d(20)}, v19")
    a(f"s_lshl_b32 s{sK3}, s{sB45}, 10\ns_add_u32 s{sK3}, s{sK3}, s{sT1}")
    a("s_waitcnt vmcnt(0)")
    stamp("h5drain")
    a.label("L_h5")
    for t in range(7):
        a(f"s_add_u32 s{sT1}, s{sK2}, {t*8192}")
        a(f"buffer_load_dwordx4 {q(64+4*t)}, v16, s[{S_WS}:{S_WS+3}], s{sT1} offen sc1")
    a("s_waitcnt lgkmcnt(0)")
    a("v_lshlrev_b32 v24, 16, v20\nv_and_b32 v25, 0xffff0000, v20\nv_lshlrev_b32 v26, 16, v21\nv_and_b32 v27, 0xffff0000, v21")
    for t in range(7):
        a(f"s_waitcnt vmcnt({6-t})")
        mfma(8, 12, 64+4*t, "0" if t == 0 else 8)
    for k in range(4): dpp("v_add_f32", 8+k, 8+k, 8+k, "row_ror:8")
    a(f"v_cmp_u_f32 vcc, v8, v9\nv_cmp_u_f32 s[{sEX}:{sEX+1}], v10, v11\ns_or_b64 vcc, vcc, s[{sEX}:{sEX+1}]\ns_cbranch_vccz L_h5ok")
    a("s_sleep 1")
    spin_check("L_h5", 5)
    a.label("L_h5ok")
    a("v_cvt_pk_bf16_f32 v4, v8, v9\nv_cvt_pk_bf16_f32 v5, v10, v11")
    a("v_lshlrev_b32 v8, 16, v4\nv_and_b32 v9, 0xffff0000, v4\nv_lshlrev_b32 v10, 16, v5\nv_and_b32 v11, 0xffff0000, v5")
    for k in range(4): a(f"v_add_f32 v{8+k}, v{8+k}, v{24+k}")
    a("v_cvt_pk_bf16_f32 v4, v8, v9\nv_cvt_pk_bf16_f32 v5, v10, v11")
    a("s_mov_b32 exec_lo, 0x00ff00ff\ns_mov_b32 exec_hi, 0")
    a(f"buffer_store_dwordx2 {d(4)}, v18, s[{S_OUT}:{S_OUT+3}], s{sK3} offen")
    a("s_cmp_lg_u32 s2, 0\ns_cbranch_scc1 L_fin")
    a("s_mov_b64 exec, 1")
    a(f"v_mov_b32 v6, s{sTAG}\nv_mov_b32 v7, 0\nbuffer_store_dword v6, v7, s[{S_WS}:{S_WS+3}], 0 offen sc1")
    a("s_branch L_fin")

    a.label("L_h2retry")
    a(f"s_add_u32 s{sCNT}, s{sCNT}, 1\ns_cmp_ge_u32 s{sCNT}, {SPIN}\ns_cbranch_scc1 L_h2fail")
    a("s_waitcnt lgkmcnt(0)")
    for k in range(8): a(f"v_subrev_u32 v{24+k}, 0x10000, v{24+k}")
    a("s_barrier")
    for ks in range(16): a(f"ds_read_b128 {q(64+4*ks)}, v{16+(ks&3)} offset:{(ks>>2)*256}")
    a(f"s_cmp_lg_u32 s{sW}, 1\ns_cbranch_scc1 L_nofl")
    a("v_mov_b32 v4, 0\nds_write_b32 v38, v4\ns_sleep 1")
    qa_loads()
    a("s_waitcnt vmcnt(0)\ns_branch L_nofl")
    a.label("L_h2fail")
    a(f"v_mov_b32 v4, 2\nv_mov_b32 v5, 0\nbuffer_store_dword v4, v5, s[{S_DBG}:{S_DBG+3}], 0 offen offset:8")
    a("s_branch L_h2ok")

    a.label("L_fin")
    if cfg.stamps:
        stamp("end")
        a("s_nop 0")
        a("s_mov_b64 exec, -1\ns_waitcnt lgkmcnt(0)")
        for k in range(10): a(f"v_writelane_b32 v4, s{sST+2*k}, {k}")
        a(f"v_writelane_b32 v4, s{sCNT}, 10\nv_writelane_b32 v4, s81, 11")
        a(f"s_lshl_b32 s{sT0}, s2, 3\ns_add_u32 s{sT0}, s{sT0}, s{sW}\ns_lshl_b32 s{sT0}, s{sT0}, 6\ns_add_u32 s{sT0}, s{sT0}, {WS_STAMP}")
        a(f"v_lshlrev_b32 v5, 2, v{vL}\ns_mov_b64 exec, 0xffff")
        a(f"buffer_store_dword v4, v5, s[{S_WS}:{S_WS+3}], s{sT0} offen")
        if cfg.dbgstamps:
            a(f"s_not_b32 s{sT0}, s{sST}\nv_writelane_b32 v4, s{sT0}, 0\ns_mov_b64 exec, 0x3ff")
            a(f"buffer_atomic_umax v4, v5, s[{S_DBG}:{S_DBG+3}], 0 offen sc1")
    a.label("L_end")
    a("s_endpgm")
    a.label("L_codeend")
    lines, added = hz.pad(a.lines)
    hdr = open("sequential_preLN__compressed_kv_cla__geglu_ffn__decode.s.ref").read().split("; Override launch")[0]
    s = hdr + f"; @launch grid=(256,1,1) block=(512,1,1) lds={LDS_BYTES}\n" + TARGET + "\n".join(lines) + "\n" + kernel_desc(KNAME, 256)
    return s, added

if __name__ == "__main__":
    out = sys.argv[1] if len(sys.argv) > 1 else "k.s"
    class C(Cfg): pass
    for kv in sys.argv[2:]:
        k, v = kv.split("=")
        setattr(C, k, eval(v))
    s, added = gen(C)
    open(out, "w").write(s)
    print("written", out, "nops added", added, "lines", s.count("\n"))
```

```python
import sys, struct
from asmlib import *
import hz

def f2u(x): return struct.unpack("<I", struct.pack("<f", x))[0]

WS_EPOCH = 0
WS_FLAGS = 0x1000
WS_H1    = 0x10000
WS_H2    = 0x100000
WS_O     = 0x200000
WS_REC   = 0x600000
WS_H4    = 0x700000
WS_H5    = 0x780000
WS_STAMP = 0x800000
L_QA = 131072
MB = 147456
L_MAXX = MB; L_LS = MB+512; L_CK = MB+2560; L_PT = MB+4608; L_QS = MB+8704
L_BAD = MB+9792; L_VAL = MB+9808; L_RETRY = MB+9824; L_CS = MB+9856; L_CP = MB+10880
L_AP = 0; L_GP = 4096; L_HS = 8192; L_AS = 9216
LDS_BYTES = MB + 12928

S_X, S_CKV, S_WQ, S_WUK, S_WUV, S_WO, S_WGU, S_WD, S_OUT, S_WS = 4, 8, 12, 16, 20, 24, 28, 32, 36, 40
S_PG, S_PU, S_DBG = 44, 46, 48
sW, sH, sJ, sTAG = 52, 53, 54, 55
sPLO, sPHI = 56, 57
sT0, sT1, sT2, sT3 = 58, 59, 60, 61
sM = 62
sCNT = 70
sB3, sB45, sFS = 71, 72, 73
sEX = 74
sC = 76
sK0, sK1, sK2, sK3 = 77, 78, 79, 80
sST = 82
SPIN = 200000

class Cfg:
    nt = " nt"
    sround = True
    stamps = False
    prefetch45 = True
    codepf = True
    b0 = True
    dbgstamps = False
    echo = False
    echo_w = 4

def gen(cfg=Cfg):
    a = Asm()
    nt = cfg.nt
    vL, vI, vS = 1, 2, 3
    def stamp(name):
        if cfg.stamps and name in cfg.stamps:
            k = cfg.stamps.index(name)
            a(f"s_memrealtime s[{sST+2*k}:{sST+2*k+1}]")
    def srd_tail(s, size): a(f"s_mov_b32 s{s+2}, {size}\ns_mov_b32 s{s+3}, 0x20000")
    def q(r): return f"v[{r}:{r+3}]"
    def d(r): return f"v[{r}:{r+1}]"
    def transpose(src, dst):
        for dw in range(4):
            for k2 in range(4):
                r0 = src + 4*(2*k2) + dw; r1 = src + 4*(2*k2+1) + dw
                a(f"v_perm_b32 v{dst+4*(2*dw)+k2}, v{r1}, v{r0}, s{sPLO}")
                a(f"v_perm_b32 v{dst+4*(2*dw+1)+k2}, v{r1}, v{r0}, s{sPHI}")
    def mfma(dst, A, B, C):
        c = q(C) if isinstance(C, int) else C
        a(f"v_mfma_f32_16x16x32_bf16 {q(dst)}, {q(A)}, {q(B)}, {c}")
    def swapred(op, regs, tmps, which):
        for r, t in zip(regs, tmps): a(f"v_mov_b32 v{t}, v{r}")
        for r, t in zip(regs, tmps): a(f"v_permlane{which}_swap_b32 v{r}, v{t}")
        for r, t in zip(regs, tmps): a(f"{op} v{r}, v{r}, v{t}")
    def dpp(op, dst, src, other, ctl, bank="0xf"):
        a(f"{op}_dpp v{dst}, v{src}, v{other} {ctl} row_mask:0xf bank_mask:{bank}")
    def bfround(dst, src):
        a(f"v_cvt_pk_bf16_f32 v{dst}, v{src}, v{src}\nv_and_b32 v{dst}, 0xffff0000, v{dst}")
    def ln_stats(vs, vq, t0):
        a(f"v_mul_f32 v{vs}, {f2u(1.0/512)}, v{vs}")
        a(f"v_mul_f32 v{vq}, {f2u(1.0/512)}, v{vq}")
        a(f"v_fma_f32 v{vq}, -v{vs}, v{vs}, v{vq}")
        a(f"v_max_f32 v{vq}, 0, v{vq}")
        bfround(vs, vs); bfround(vq, vq)
        a(f"v_add_f32 v{vq}, {f2u(1e-5)}, v{vq}")
        bfround(vq, vq)
        a(f"v_sqrt_f32 v{vq}, v{vq}")
        bfround(vq, vq)
        a(f"v_rcp_f32 v{vq}, v{vq}")
    def ln_apply(src, n, vs, vq, t0):
        for k in range(n): a(f"v_lshlrev_b32 v{t0+2*k}, 16, v{src+k}\nv_and_b32 v{t0+2*k+1}, 0xffff0000, v{src+k}")
        for k in range(2*n): a(f"v_sub_f32 v{t0+k}, v{t0+k}, v{vs}")
        for k in range(n): a(f"v_cvt_pk_bf16_f32 v{src+k}, v{t0+2*k}, v{t0+2*k+1}")
        for k in range(n): a(f"v_lshlrev_b32 v{t0+2*k}, 16, v{src+k}\nv_and_b32 v{t0+2*k+1}, 0xffff0000, v{src+k}")
        for k in range(2*n): a(f"v_mul_f32 v{t0+k}, v{t0+k}, v{vq}")
        for k in range(n): a(f"v_cvt_pk_bf16_f32 v{src+k}, v{t0+2*k}, v{t0+2*k+1}")
    def spin_check(lbl_retry, code):
        l = a.newlabel("L_sp")
        a(f"s_add_u32 s{sCNT}, s{sCNT}, 1\ns_cmp_lt_u32 s{sCNT}, {SPIN}\ns_cbranch_scc1 {lbl_retry}")
        a(f"v_mov_b32 v4, {code}\nv_mov_b32 v5, 0\nbuffer_store_dword v4, v5, s[{S_DBG}:{S_DBG+3}], 0 offen offset:{4*code}")
    def make_tag():
        a("s_waitcnt lgkmcnt(0)")
        a(f"s_mul_i32 s{sTAG}, s{sTAG}, 0x9E3779B1\ns_add_u32 s{sTAG}, s{sTAG}, 0x7F4A7C15")
    def ckv_issue():
        a(f"s_and_b32 s{sT0}, s2, 127\ns_lshl_b32 s{sT0}, s{sT0}, 17\ns_lshl_b32 s{sT1}, s{sW}, 14\ns_add_u32 s{sT0}, s{sT0}, s{sT1}")
        a(f"v_lshlrev_b32 v4, 4, v{vL}")
        for r in range(16):
            a(f"s_add_u32 m0, s{sT1}, {r*1024}")
            a(f"v_xor_b32 v{5+(r&1)}, {r<<4}, v4")
            a(f"buffer_load_dwordx4 v{5+(r&1)}, s[{S_CKV}:{S_CKV+3}], s{sT0} offen{nt} lds")
            a(f"s_add_u32 s{sT0}, s{sT0}, 1024")

    kernel_begin(a, KNAME)
    a.label("L_code0")
    stamp("start")
    a("s_cmp_ge_u32 s2, 256\ns_cbranch_scc1 L_end")
    for s, n in ((S_X,'x'),(S_WQ,'wq'),(S_WS,'ws'),(S_WUK,'wuk'),(S_CKV,'ckv'),(S_WUV,'wuv'),(S_WO,'wo'),(S_WD,'wd'),(S_OUT,'out'),(S_PG,'wg'),(S_PU,'wu'),(S_DBG,'dbg')):
        a(f"s_load_dwordx2 s[{s}:{s+1}], s[0:1], {ARG[n]}")
    a(f"v_lshrrev_b32 v4, 6, v0\nv_and_b32 v{vL}, 63, v0")
    a(f"v_readfirstlane_b32 s{sW}, v4")
    a(f"v_and_b32 v{vI}, 15, v0\nv_bfe_u32 v{vS}, v0, 4, 2")
    for s, n in ((S_X,'x'),(S_WQ,'wq'),(S_WS,'ws'),(S_WUK,'wuk'),(S_CKV,'ckv'),(S_WUV,'wuv'),(S_WO,'wo'),(S_WD,'wd'),(S_OUT,'out'),(S_WGU,'wg'),(S_DBG,'dbg')):
        srd_tail(s, SIZE[n])
    a(f"s_and_b32 s{sH}, s2, 7\ns_lshr_b32 s{sT0}, s2, 6\ns_lshl_b32 s{sT0}, s{sT0}, 3\ns_or_b32 s{sH}, s{sH}, s{sT0}")
    a(f"s_bfe_u32 s{sJ}, s2, 0x30003")
    a(f"s_mov_b32 s{sPLO}, 0x05040100\ns_mov_b32 s{sPHI}, 0x07060302")
    a(f"s_bfe_u32 s{sB3}, s2, 0x20005")
    a(f"s_and_b32 s{sB45}, s{sJ}, 3")
    a(f"s_lshr_b32 s{sT0}, s{sJ}, 2\ns_lshl_b32 s{sFS}, s{sH}, 1\ns_add_u32 s{sFS}, s{sFS}, s{sT0}")
    for g in range(4):
        m = 0x000F000F << (4*g)
        a(f"s_mov_b32 s{sM+2*g}, {m:#x}\ns_mov_b32 s{sM+2*g+1}, {m:#x}")
    a(f"s_mov_b32 s{sCNT}, 0")
    if cfg.stamps:
        for k in range(1, 10): a(f"s_mov_b32 s{sST+2*k}, 0")
    a("s_waitcnt lgkmcnt(0)")
    stamp("karg")
    a(f"s_load_dword s{sTAG}, s[{S_WS}:{S_WS+1}], {WS_EPOCH}")
    a(f"s_bitcmp1_b32 s{sW}, 0\ns_cselect_b32 s{S_WGU}, s{S_PU}, s{S_PG}\ns_cselect_b32 s{S_WGU+1}, s{S_PU+1}, s{S_PG+1}")
    a(f"s_cmp_lg_u32 s{sW}, 0\ns_cbranch_scc1 L_not0")

    a(f"v_and_b32 v4, 3, v{vL}\nv_lshlrev_b32 v4, 10, v4")
    a(f"v_lshrrev_b32 v5, 2, v{vL}\nv_lshl_add_u32 v5, v5, 6, v4")
    a(f"v_lshl_add_u32 v4, v{vS}, 4, v4")
    a(f"s_lshl_b32 s{sT0}, s{sJ}, 7")
    for k in range(4): a(f"buffer_load_dwordx4 {q(8+4*k)}, v5, s[{S_X}:{S_X+3}], 0 offen offset:{16*k}")
    for k in range(2): a(f"buffer_load_dwordx4 {q(24+4*k)}, v4, s[{S_X}:{S_X+3}], s{sT0} offen offset:{64*k}")
    a(f"v_lshlrev_b32 v6, 16, v{vS}\nv_lshl_add_u32 v6, v{vI}, 4, v6")
    a(f"s_lshl_b32 s{sT0}, s{sJ}, 19\ns_lshl_b32 s{sT1}, s{sH}, 8\ns_add_u32 s{sT0}, s{sT0}, s{sT1}")
    for ks in range(2):
        for r in range(8):
            a(f"s_add_u32 s{sT1}, s{sT0}, {(32*ks+r)*8192}")
            a(f"buffer_load_dwordx4 {q(64+32*ks+4*r)}, v6, s[{S_WQ}:{S_WQ+3}], s{sT1} offen{nt}")
    a(f"s_mov_b32 s{sK0}, 0x3f803f80")
    a("v_mov_b32 v32, 0\nv_mov_b32 v33, 0")
    stamp("w0_iss")
    if cfg.b0: a("s_barrier")
    a("s_waitcnt vmcnt(18)")
    stamp("w0_x")
    for k in range(16):
        a(f"v_dot2_f32_bf16 v32, v{8+k}, s{sK0}, v32\nv_dot2_f32_bf16 v33, v{8+k}, v{8+k}, v33")
    for c in ("row_ror:4", "row_ror:8"):
        dpp("v_add_f32", 32, 32, 32, c); dpp("v_add_f32", 33, 33, 33, c)
    swapred("v_add_f32", (32, 33), (34, 35), 16)
    swapred("v_add_f32", (32, 33), (34, 35), 32)
    ln_stats(32, 33, 34)
    a("s_waitcnt vmcnt(16)")
    ln_apply(24, 8, 32, 33, 8)
    for g in range(4):
        for k in range(8):
            a(f"v_cndmask_b32 v{32+8*g+k}, 0, v{24+k}, s[{sM+2*g}:{sM+2*g+1}]")
    stamp("w0_ln")
    a(f"s_mov_b32 s{sK0}, 0x05030201\ns_mov_b32 s{sK1}, 0x06050302\ns_mov_b32 s{sK2}, 0x07060503")
    a(f"s_lshl_b32 s{sT0}, s{sH}, 3\ns_add_u32 s{sT0}, s{sT0}, s{sJ}\ns_lshl_b32 s{sT0}, s{sT0}, 11\ns_add_u32 s{sT0}, s{sT0}, {WS_H1}")
    a(f"v_lshlrev_b32 v4, 4, v{vL}")
    make_tag()
    a(f"v_mov_b32 v19, s{sTAG}\nv_mov_b32 v23, s{sTAG}")
    for ks in range(2):
        a(f"s_waitcnt vmcnt({8-8*ks})")
        if ks == 1: stamp("w0_wq")
        dst = 128 if ks == 0 else 64
        transpose(64+32*ks, dst)
        for g in range(4):
            for t in range(2):
                mfma(8+4*t, 32+8*g+4*ks, dst+4*(4*t+g), "0" if (ks == 0 and g == 0) else 8+4*t)
    for t in range(2):
        r = 8+4*t; o = 16+4*t
        a(f"v_perm_b32 v{o}, v{r+1}, v{r}, s{sK0}\nv_perm_b32 v{o+1}, v{r+2}, v{r+1}, s{sK1}\nv_perm_b32 v{o+2}, v{r+3}, v{r+2}, s{sK2}")
        a(f"buffer_store_dwordx4 {q(o)}, v4, s[{S_WS}:{S_WS+3}], s{sT0} offen offset:{1024*t} sc1")
    stamp("w0_pub")
    a("s_waitcnt vmcnt(0)")
    stamp("w0_drain")
    a("s_barrier\ns_barrier")
    ckv_issue()
    a("s_branch L_b3")

    a.label("L_not0")
    a(f"s_cmp_lg_u32 s{sW}, 1\ns_cbranch_scc1 L_not1")
    def qa_pub_addr():
        a(f"v_lshrrev_b32 v4, 2, v{vI}\nv_lshlrev_b32 v4, 1, v4\nv_lshrrev_b32 v5, 1, v{vS}\nv_add_u32 v4, v4, v5")
        a(f"s_lshl_b32 s{sT0}, s{sJ}, 3\ns_and_b32 s{sT1}, s{sH}, 15\ns_xor_b32 s{sT0}, s{sT0}, s{sT1}")
        a(f"v_xor_b32 v4, s{sT0}, v4\nv_lshlrev_b32 v4, 4, v4")
        a(f"v_and_b32 v5, 1, v{vS}\nv_lshl_add_u32 v4, v5, 3, v4")
        a(f"v_and_b32 v5, 3, v{vI}\nv_lshl_add_u32 v42, v5, 15, v4")
        a(f"v_lshlrev_b32 v43, 4, v{vL}")
        a(f"s_lshl_b32 s{sK3}, s{sH}, 10\ns_add_u32 s{sK3}, s{sK3}, {WS_H2}")
    qa_pub_addr()
    if cfg.b0: a("s_barrier")
    a(f"v_lshlrev_b32 v6, 13, v{vI}\nv_lshl_add_u32 v6, v{vS}, 4, v6")
    a(f"s_lshl_b32 s{sT0}, s{sJ}, 19\ns_lshl_b32 s{sT1}, s{sH}, 8\ns_add_u32 s{sT0}, s{sT0}, s{sT1}")
    for n_ in range(4):
        for ks in range(4):
            a(f"buffer_load_dwordx4 {q(64+16*n_+4*ks)}, v6, s[{S_WUK}:{S_WUK+3}], s{sT0} offen offset:{64*ks}{nt}")
        if n_ < 3: a(f"s_add_u32 s{sT0}, s{sT0}, {16*8192}")
    make_tag()
    a(f"v_lshlrev_b32 v44, 4, v{vI}\nv_lshl_add_u32 v44, v{vS}, 1, v44\nv_add_u32 v44, {L_QS}, v44")
    a(f"v_and_b32 v45, 3, v{vI}\nv_mul_u32_u24 v45, 272, v45\nv_lshl_add_u32 v45, v{vS}, 4, v45\nv_add_u32 v45, {L_QS}, v45")
    a(f"s_mov_b32 s{sK0}, 0x0504030c\ns_mov_b32 s{sK1}, 0x0403020c")
    a(f"s_lshl_b32 s{sT2}, s{sH}, 14\ns_add_u32 s{sT2}, s{sT2}, {WS_H1}")
    a("s_barrier")
    def h1_loads():
        for jj in range(8):
            a(f"s_add_u32 s{sT0}, s{sT2}, {jj*2048}")
            for t in range(2):
                a(f"buffer_load_dwordx4 {q(128+8*jj+4*t)}, v43, s[{S_WS}:{S_WS+3}], s{sT0} offen offset:{1024*t} sc1")
    h1_loads()
    def fl_load():
        a(f"s_mov_b32 s{sT1}, {WS_FLAGS}")
        a(f"buffer_load_dwordx4 {q(48)}, v43, s[{S_WS}:{S_WS+3}], s{sT1} offen sc1")
    def fl_cmp():
        a(f"v_xor_b32 v4, s{sTAG}, v48")
        for k in range(1, 4): a(f"v_bitop3_b32 v4, v{48+k}, s{sTAG}, v4 bitop3:0xbe")
        a("v_cmp_ne_u32 vcc, 0, v4")
    fl_load()
    a("s_barrier")
    a("s_branch L_h1chk")
    a.label("L_h1retry")
    a("s_sleep 1")
    h1_loads()
    a.label("L_h1chk")
    a("s_waitcnt vmcnt(0)")
    stamp("w1_h1")
    a(f"v_xor_b32 v4, s{sTAG}, v131")
    for k in range(1, 16): a(f"v_bitop3_b32 v4, v{131+4*k}, s{sTAG}, v4 bitop3:0xbe")
    a("v_cmp_ne_u32 vcc, 0, v4\ns_cbranch_vccz L_h1ok")
    spin_check("L_h1retry", 1)
    a.label("L_h1ok")
    for jj in range(8):
        for t in range(2):
            r = 128+8*jj+4*t
            if jj == 0:
                o = 8+4*t
                a(f"v_lshlrev_b32 v{o}, 8, v{r}\nv_perm_b32 v{o+1}, v{r+1}, v{r}, s{sK0}\nv_perm_b32 v{o+2}, v{r+2}, v{r+1}, s{sK1}\nv_and_b32 v{o+3}, 0xffffff00, v{r+2}")
            else:
                o = 16+4*t
                a(f"v_lshlrev_b32 v{o}, 8, v{r}\nv_perm_b32 v{o+1}, v{r+1}, v{r}, s{sK0}\nv_perm_b32 v{o+2}, v{r+2}, v{r+1}, s{sK1}\nv_and_b32 v{o+3}, 0xffffff00, v{r+2}")
                for b in range(4): a(f"v_add_f32 v{8+4*t+b}, v{8+4*t+b}, v{o+b}")
    for t in range(2):
        for bp in range(2):
            a(f"v_cvt_pk_bf16_f32 v{16+2*t+bp}, v{8+4*t+2*bp}, v{8+4*t+2*bp+1}")
    for t in range(2):
        for bp in range(2):
            a(f"ds_write_b16 v44, v{16+2*t+bp} offset:{272*(2*bp)+8*t}")
            a(f"ds_write_b16_d16_hi v44, v{16+2*t+bp} offset:{272*(2*bp+1)+8*t}")
    for ks in range(4): a(f"ds_read_b128 {q(8+4*ks)}, v45 offset:{64*ks}")
    for ks in range(4):
        a(f"s_waitcnt lgkmcnt({3-ks})")
        for n_ in range(4):
            mfma(24+4*n_, 64+16*n_+4*ks, 8+4*ks, "0" if ks == 0 else 24+4*n_)
    for n_ in range(4):
        a(f"s_mov_b64 exec, s[{sM+2*n_}:{sM+2*n_+1}]")
        a(f"v_cvt_pk_bf16_f32 v40, v{24+4*n_}, v{25+4*n_}\nv_cvt_pk_bf16_f32 v41, v{26+4*n_}, v{27+4*n_}")
    a("s_mov_b64 exec, -1")
    a(f"buffer_store_dwordx2 {d(40)}, v42, s[{S_WS}:{S_WS+3}], s{sK3} offen sc1")
    stamp("w1_qapub")
    fl_cmp()
    a("s_cbranch_vccz L_fl1")
    fl_load()
    a.label("L_fl1")
    ckv_issue()
    a("s_waitcnt vmcnt(16)")
    a.label("L_fl2")
    fl_cmp()
    a("s_cbranch_vccz L_fl3")
    a("s_sleep 1")
    fl_load()
    a("s_waitcnt vmcnt(0)")
    spin_check("L_fl2", 6)
    a.label("L_fl3")
    def qa_loads():
        a(f"s_lshl_b32 s{sT0}, s{sB3}, 15\ns_lshr_b32 s{sT1}, s2, 7\ns_lshl_b32 s{sT1}, s{sT1}, 14\ns_add_u32 s{sT0}, s{sT0}, s{sT1}\ns_add_u32 s{sT0}, s{sT0}, {WS_H2}")
        a(f"v_lshlrev_b32 v4, 4, v{vL}")
        for r in range(16):
            a(f"s_mov_b32 m0, {L_QA + r*1024}")
            a(f"s_add_u32 s{sT1}, s{sT0}, {r*1024}")
            a(f"buffer_load_dwordx4 v4, s[{S_WS}:{S_WS+3}], s{sT1} offen sc1 lds")
    qa_loads()
    a("s_branch L_b3")

    a.label("L_not1")
    a(f"s_cmp_ge_u32 s{sW}, 4\ns_cbranch_scc1 L_w47")
    if cfg.b0: a("s_barrier")
    ckv_issue()
    make_tag()
    a(f"v_mov_b32 v4, {L_BAD}\nv_mov_b32 v5, 0\nds_write_b32 v4, v5\ns_waitcnt lgkmcnt(0)")
    a("s_barrier\ns_barrier")
    a("s_branch L_b3")
    a.label("L_w47")
    a(f"s_cmp_lg_u32 s{sW}, 4\ns_cbranch_scc1 L_not4")
    a("v_mov_b32 v8, -1\nv_mov_b32 v9, -1\nv_mov_b32 v10, -1\nv_mov_b32 v11, -1")
    qa_pub_addr()
    if cfg.b0: a("s_barrier")
    a(f"buffer_store_dwordx2 {d(8)}, v42, s[{S_WS}:{S_WS+3}], s{sK3} offen sc1")
    a(f"s_lshl_b32 s{sT0}, s{sB45}, 6\ns_add_u32 s{sT0}, s{sT0}, s{sFS}\ns_lshl_b32 s{sT0}, s{sT0}, 10\ns_add_u32 s{sT1}, s{sT0}, {WS_H4}")
    a(f"buffer_store_dwordx4 {q(8)}, v43, s[{S_WS}:{S_WS+3}], s{sT1} offen sc1")
    a(f"s_add_u32 s{sT1}, s{sT0}, {WS_H5}")
    a(f"buffer_store_dwordx4 {q(8)}, v43, s[{S_WS}:{S_WS+3}], s{sT1} offen sc1")
    make_tag()
    a(f"v_mov_b32 v12, s{sTAG}\nv_mov_b32 v13, 0")
    a(f"s_lshl_b32 s{sT0}, s2, 2\ns_add_u32 s{sT0}, s{sT0}, {WS_FLAGS}")
    a("s_waitcnt vmcnt(0)")
    stamp("w4_rst")
    a("s_mov_b64 exec, 1")
    a(f"buffer_store_dword v12, v13, s[{S_WS}:{S_WS+3}], s{sT0} offen sc1")
    a("s_mov_b64 exec, -1")
    a("s_branch L_nopf")
    a.label("L_not4")
    if cfg.codepf:
        a(f"s_cmp_lg_u32 s{sW}, 7\ns_cbranch_scc1 L_nopf3")
        a(f"s_getpc_b64 s[{sEX}:{sEX+1}]")
        a.label("L_pc")
        a(f"s_sub_u32 s{sEX}, s{sEX}, L_pc-L_code0\ns_subb_u32 s{sEX+1}, s{sEX+1}, 0")
        a(f"s_lshr_b32 s{sT0}, s2, 3\ns_lshl_b32 s{sT0}, s{sT0}, 10")
        a(f"v_lshl_add_u32 v4, v{vL}, 7, s{sT0}")
        a(f"v_cmp_gt_u32 vcc, L_codeend-L_code0, v4")
        a(f"s_and_b64 exec, vcc, 0xff\ns_cbranch_execz L_nopf2")
        a(f"global_load_dword v63, v4, s[{sEX}:{sEX+1}]")
        a.label("L_nopf2")
        a("s_mov_b64 exec, -1")
    a.label("L_nopf3")
    if cfg.b0: a("s_barrier")
    make_tag()
    a.label("L_nopf")
    a("s_barrier\ns_barrier")
    ckv_issue()

    a.label("L_b3")
    if cfg.stamps: a(f"s_mov_b32 s81, s{sCNT}")
    a(f"s_mov_b32 s{sCNT}, 0")
    for kk in range(4):
        a(f"v_add_u32 v4, {4*kk}, v{vS}\nv_xor_b32 v4, v4, v{vI}\nv_lshlrev_b32 v4, 4, v4\nv_lshl_add_u32 v4, v{vI}, 10, v4")
        a(f"v_add_u32 v{20+kk}, {L_QA}, v4")
        a(f"v_lshl_add_u32 v{16+kk}, s{sW}, 14, v4")
    a(f"v_lshrrev_b32 v4, 2, v{vI}\nv_lshlrev_b32 v4, 1, v4\nv_lshl_add_u32 v4, v{vS}, 3, v4")
    a(f"v_bfe_u32 v5, v{vI}, 1, 1\nv_lshl_add_u32 v5, s{sW}, 3, v5")
    a(f"v_and_b32 v6, 15, v4\nv_xor_b32 v5, v5, v6\nv_lshlrev_b32 v5, 4, v5\nv_lshl_add_u32 v4, v4, 10, v5")
    a(f"v_and_b32 v5, 1, v{vI}\nv_lshl_add_u32 v4, v5, 3, v4")
    for t in range(4):
        for aa in range(2):
            a(f"v_xor_b32 v{24+2*t+aa}, {(((2*t)|aa)<<4) | (aa<<10)}, v4")
    a(f"v_lshlrev_b32 v33, 5, v{vI}\nv_add_u32 v33, {L_MAXX}, v33\nv_lshl_add_u32 v32, s{sW}, 2, v33")
    a(f"s_lshr_b32 s{sT0}, s{sW}, 1\ns_lshl_b32 s{sT0}, s{sT0}, 10\ns_and_b32 s{sT1}, s{sW}, 1\ns_lshl_b32 s{sT1}, s{sT1}, 9\ns_add_u32 s{sT0}, s{sT0}, s{sT1}\ns_add_u32 s{sT0}, s{sT0}, {L_PT}")
    a(f"v_lshrrev_b32 v4, 1, v{vS}\nv_lshlrev_b32 v4, 8, v4\nv_lshl_add_u32 v4, v{vI}, 4, v4\nv_and_b32 v5, 1, v{vS}\nv_lshl_add_u32 v4, v5, 2, v4\nv_add_u32 v34, s{sT0}, v4")
    a(f"v_lshlrev_b32 v35, 4, v{vL}\nv_add_u32 v35, {L_PT}, v35")
    a(f"v_lshlrev_b32 v4, 7, v{vI}\nv_lshl_add_u32 v4, v{vS}, 2, v4\nv_lshl_add_u32 v4, s{sW}, 4, v4\nv_add_u32 v36, {L_LS}, v4")
    a(f"v_lshlrev_b32 v4, 17, v{vI}\nv_lshl_add_u32 v4, v{vS}, 4, v4\nv_lshl_add_u32 v37, s{sW}, 7, v4")
    a(f"v_mov_b32 v38, {L_BAD}")
    import math
    cc = math.log2(math.e) if cfg.sround else math.log2(math.e) * 128 ** -0.5
    a(f"s_mov_b32 s{sC}, {f2u(cc)}")
    a(f"s_lshl_b32 s{sT0}, s{sB45}, 7")
    a(f"v_add_u32 v4, s{sT0}, v{vL}\nv_lshlrev_b32 v4, 13, v4\nv_lshl_add_u32 v39, s{sFS}, 7, v4")
    a(f"s_lshl_b32 s{sT0}, s{sFS}, 16\ns_lshl_b32 s{sT2}, s{sB45}, 14\ns_add_u32 s{sT0}, s{sT0}, s{sT2}")
    a(f"v_lshl_add_u32 v40, v{vL}, 7, s{sT0}")
    a(f"s_and_b32 s{sT0}, s{sW}, 6\ns_cmp_lg_u32 s{sT0}, 2\ns_cbranch_scc1 L_b3o")
    a("s_waitcnt vmcnt(0)")
    a("s_barrier")
    if cfg.prefetch45:
        a(f"s_and_b32 s{sT0}, s{sW}, 1\ns_lshl_b32 s{sT1}, s{sT0}, 19\ns_lshl_b32 s{sT0}, s{sT0}, 13")
        a(f"buffer_load_dword v41, v39, s[{S_WUV}:{S_WUV+3}], s{sT1} offen{nt}")
        a(f"buffer_load_dword v41, v40, s[{S_WO}:{S_WO+3}], s{sT0} offen{nt}")
    a("s_branch L_b3j")
    a.label("L_b3o")
    a("s_barrier")
    stamp("b3")
    a("s_waitcnt vmcnt(0)")
    a.label("L_b3j")
    stamp("ckv")
    for ks in range(16): a(f"ds_read_b128 {q(64+4*ks)}, v{16+(ks&3)} offset:{(ks>>2)*256}")
    a.label("L_nofl")
    a("s_waitcnt lgkmcnt(0)")
    a("s_barrier")
    stamp("b4")
    for ks in range(16): a(f"ds_read_b128 {q(128+4*ks)}, v{20+(ks&3)} offset:{(ks>>2)*256}")
    for ks in range(16):
        a(f"s_waitcnt lgkmcnt({15-ks})")
        mfma(8, 64+4*ks, 128+4*ks, "0" if ks == 0 else 8)
    trl = [(kk, t, aa) for kk in range(4) for t in range(4) for aa in range(2)]
    def tr_reads(lo, hi):
        for (kk, t, aa) in trl[lo:hi]:
            if kk == 2 and t == 0 and aa == 0:
                for k in range(8): a(f"v_add_u32 v{24+k}, 0x10000, v{24+k}")
            a(f"ds_read_b64_tr_b16 {d(192+16*kk+4*t+2*aa)}, v{24+2*t+aa} offset:{(kk&1)*32768}")
    a("v_cmp_u_f32 vcc, v8, v8\ns_cbranch_vccz L_sok")
    a("v_mov_b32 v4, 1\nds_write_b32 v38, v4")
    a.label("L_sok")
    if cfg.sround:
        a("v_cvt_pk_bf16_f32 v4, v8, v9\nv_cvt_pk_bf16_f32 v5, v10, v11")
        a("v_lshlrev_b32 v8, 16, v4\nv_and_b32 v9, 0xffff0000, v4\nv_lshlrev_b32 v10, 16, v5\nv_and_b32 v11, 0xffff0000, v5")
        for k in range(4): a(f"v_mul_f32 v{8+k}, {f2u(128 ** -0.5)}, v{8+k}")
        a("v_cvt_pk_bf16_f32 v4, v8, v9\nv_cvt_pk_bf16_f32 v5, v10, v11")
        a("v_lshlrev_b32 v8, 16, v4\nv_and_b32 v9, 0xffff0000, v4\nv_lshlrev_b32 v10, 16, v5\nv_and_b32 v11, 0xffff0000, v5")
    a("v_max3_f32 v12, v8, v9, v10\nv_max_f32 v12, v12, v11")
    swapred("v_max_f32", (12,), (13,), 16)
    swapred("v_max_f32", (12,), (13,), 32)
    a("ds_write_b32 v32, v12")
    tr_reads(0, 12)
    a("s_waitcnt lgkmcnt(12)")
    a("s_barrier")
    stamp("b5")
    a(f"ds_read_b128 {q(64)}, v33\nds_read_b128 {q(68)}, v33 offset:16\nds_read_b32 v72, v38")
    tr_reads(12, 24)
    a("s_waitcnt lgkmcnt(12)")
    a(f"v_readfirstlane_b32 s{sT0}, v72")
    a("v_max3_f32 v12, v64, v65, v66\nv_max3_f32 v13, v67, v68, v69\nv_max3_f32 v12, v12, v70, v71\nv_max_f32 v12, v12, v13")
    a(f"s_cmp_lg_u32 s{sT0}, 0\ns_cbranch_scc1 L_h2retry")
    a.label("L_h2ok")
    a(f"v_mul_f32 v12, s{sC}, v12")
    for k in range(4): a(f"v_fma_f32 v{8+k}, v{8+k}, s{sC}, -v12")
    for k in range(4): a(f"v_exp_f32 v{8+k}, v{8+k}")
    a("v_cvt_pk_bf16_f32 v4, v8, v10\nv_cvt_pk_bf16_f32 v5, v9, v11")
    a("v_add_f32 v8, v8, v9\nv_add_f32 v10, v10, v11\nv_add_f32 v8, v8, v10")
    a("ds_write2_b32 v34, v4, v5 offset0:0 offset1:2\nds_write_b32 v36, v8")
    tr_reads(24, 32)
    a("s_waitcnt lgkmcnt(8)")
    a("s_barrier")
    stamp("b6")
    for kk in range(4): a(f"ds_read_b128 {q(64+4*kk)}, v35 offset:{kk*1024}")
    a(f"s_lshr_b32 s{sT0}, s2, 7\ns_lshl_b32 s{sT0}, s{sT0}, 21\ns_and_b32 s{sT1}, s2, 127\ns_lshl_b32 s{sT1}, s{sT1}, 10\ns_add_u32 s{sT0}, s{sT0}, s{sT1}\ns_add_u32 s{sT0}, s{sT0}, {WS_O}")
    for kk in range(4):
        a(f"s_waitcnt lgkmcnt({3-kk})")
        for t in range(4):
            mfma(80+4*t, 192+16*kk+4*t, 64+4*kk, "0" if kk == 0 else 80+4*t)
    for tp in range(2):
        for u in range(2):
            r = 80+4*(2*tp+u)
            a(f"v_cvt_pk_bf16_f32 v{96+4*tp+2*u}, v{r}, v{r+1}\nv_cvt_pk_bf16_f32 v{97+4*tp+2*u}, v{r+2}, v{r+3}")
        a(f"buffer_store_dwordx4 {q(96+4*tp)}, v37, s[{S_WS}:{S_WS+3}], s{sT0} offen offset:{64*tp} sc1")
    stamp("ost")
    a("v_bitop3_b32 v4, v96, v97, v98 bitop3:0x96\nv_bitop3_b32 v5, v99, v100, v101 bitop3:0x96\nv_bitop3_b32 v4, v4, v102, v103 bitop3:0x96\nv_xor_b32 v4, v4, v5")
    a(f"ds_write_b32 v36, v4 offset:{L_CK-L_LS}")
    a("s_waitcnt lgkmcnt(0)")
    a("s_barrier")
    a(f"s_cmp_ge_u32 s{sW}, 4\ns_cbranch_scc1 L_p45b")
    a(f"s_cmp_lg_u32 s{sW}, 0\ns_cbranch_scc1 L_norec")
    a(f"v_lshlrev_b32 v4, 7, v{vI}\nv_lshl_add_u32 v4, v{vS}, 5, v4\nv_add_u32 v4, {L_LS}, v4")
    a(f"ds_read_b128 {q(64)}, v4\nds_read_b128 {q(68)}, v4 offset:16\nds_read_b128 {q(72)}, v4 offset:{L_CK-L_LS}\nds_read_b128 {q(76)}, v4 offset:{L_CK-L_LS+16}")
    a(f"s_and_b32 s{sT0}, s2, 127\ns_lshl_b32 s{sT0}, s{sT0}, 1\ns_lshr_b32 s{sT1}, s2, 7\ns_add_u32 s{sT0}, s{sT0}, s{sT1}\ns_lshl_b32 s{sT0}, s{sT0}, 8\ns_add_u32 s{sT0}, s{sT0}, {WS_REC}")
    a(f"v_lshlrev_b32 v4, 4, v{vL}\nv_mov_b32 v15, s{sTAG}")
    a("s_waitcnt lgkmcnt(2)")
    a("v_add_f32 v64, v64, v65\nv_add_f32 v66, v66, v67\nv_add_f32 v68, v68, v69\nv_add_f32 v70, v70, v71\nv_add_f32 v64, v64, v66\nv_add_f32 v68, v68, v70\nv_add_f32 v13, v64, v68")
    a("s_waitcnt lgkmcnt(0)")
    a("v_bitop3_b32 v72, v72, v73, v74 bitop3:0x96\nv_bitop3_b32 v75, v75, v76, v77 bitop3:0x96\nv_bitop3_b32 v72, v72, v78, v79 bitop3:0x96\nv_xor_b32 v14, v72, v75")
    for wh in (16, 32):
        a(f"v_mov_b32 v5, v13\nv_mov_b32 v6, v14\nv_permlane{wh}_swap_b32 v13, v5\nv_permlane{wh}_swap_b32 v14, v6\nv_add_f32 v13, v13, v5\nv_xor_b32 v14, v14, v6")
    a("v_bitop3_b32 v14, v14, v12, v13 bitop3:0x96")
    a("s_mov_b64 exec, 0xffff")
    a(f"buffer_store_dwordx4 {q(12)}, v4, s[{S_WS}:{S_WS+3}], s{sT0} offen sc1")
    a("s_mov_b64 exec, -1")
    a.label("L_norec")
    a(f"v_lshlrev_b32 v6, 13, v{vS}\nv_lshl_add_u32 v6, v{vI}, 4, v6")
    a(f"s_lshl_b32 s{sT0}, s{sFS}, 16\ns_lshl_b32 s{sT1}, s{sW}, 8\ns_add_u32 s{sT0}, s{sT0}, s{sT1}")
    for ks in range(2):
        for r4 in range(2):
            a(f"s_add_u32 s{sT1}, s{sT0}, {(32*ks+4*r4)*1024}")
            for r in range(4):
                a(f"buffer_load_dwordx4 {q(128+32*ks+16*r4+4*r)}, v6, s[{S_WO}:{S_WO+3}], s{sT1} offen offset:{1024*r}{nt}")
    a("s_waitcnt vmcnt(16)")
    stamp("drain")
    a("s_barrier")
    stamp("b8")
    a(f"v_and_b32 v4, 7, v{vI}\nv_lshlrev_b32 v4, 8, v4\nv_lshrrev_b32 v5, 3, v{vI}\nv_lshl_add_u32 v4, v5, 7, v4\nv_lshl_add_u32 v4, v{vS}, 5, v4\nv_add_u32 v16, {L_CP}, v4")
    a(f"v_mov_b32 v17, {L_VAL}\nv_lshlrev_b32 v18, 4, v{vL}")
    a("s_waitcnt vmcnt(8)")
    transpose(128, 192)
    a("s_waitcnt vmcnt(0)")
    transpose(160, 128)
    stamp("wo")
    a(f"s_cmp_ge_u32 s{sH}, 28\ns_cbranch_scc1 L_nogu")
    a(f"v_lshrrev_b32 v4, 2, v{vI}\nv_lshlrev_b32 v4, 2, v4\nv_add_u32 v4, v4, v{vS}\nv_mul_u32_u24 v4, {8*3584}, v4\nv_and_b32 v5, 3, v{vI}\nv_lshl_add_u32 v6, v5, 4, v4")
    a(f"s_lshr_b32 s{sT0}, s{sW}, 1\ns_mul_i32 s{sT0}, s{sT0}, {256*3584}\ns_lshl_b32 s{sT1}, s{sFS}, 6\ns_add_u32 s{sT0}, s{sT0}, s{sT1}")
    for gg in range(2):
        for r in range(8):
            a(f"s_add_u32 s{sT1}, s{sT0}, {(128*gg+r)*3584}")
            a(f"buffer_load_dwordx4 {q((160 if gg == 0 else 224)+4*r)}, v6, s[{S_WGU}:{S_WGU+3}], s{sT1} offen{nt}")
    a.label("L_nogu")
    a(f"s_lshl_b32 s{sK3}, s{sB45}, 6\ns_add_u32 s{sK3}, s{sK3}, s{sFS}\ns_lshl_b32 s{sK3}, s{sK3}, 10\ns_lshl_b32 s{sT1}, s{sW}, 8\ns_add_u32 s{sK3}, s{sK3}, s{sT1}")
    a(f"s_add_u32 s{sK2}, s{sK3}, {WS_H4}")
    a.label("L_b10a")
    a("s_barrier")
    a(f"ds_read_b128 {q(20)}, v17\nds_read_b128 {q(8)}, v16\nds_read_b128 {q(12)}, v16 offset:16")
    a("s_waitcnt lgkmcnt(2)")
    a("v_bitop3_b32 v20, v20, v21, v22 bitop3:0x96\nv_cmp_ne_u32 vcc, v20, v23\ns_cbranch_vccz L_h3oka")
    a(f"s_add_u32 s{sCNT}, s{sCNT}, 1\ns_cmp_ge_u32 s{sCNT}, {SPIN}\ns_cbranch_scc1 L_h3oka")
    a("s_waitcnt lgkmcnt(0)\ns_barrier\ns_branch L_b10a")
    a.label("L_h3oka")
    stamp("b10")
    a("s_waitcnt lgkmcnt(0)")
    for c in ("quad_perm:[1,0,3,2]", "quad_perm:[2,3,0,1]", "row_half_mirror"):
        for k in range(8): dpp("v_add_f32", 8+k, 8+k, 8+k, c)
    for k in range(4): a(f"v_cvt_pk_bf16_f32 v{20+k}, v{8+2*k}, v{9+2*k}")
    for k in range(4): a(f"v_mov_b32_dpp v{24+k}, v{20+k} row_ror:8 row_mask:0xf bank_mask:0xf")
    for ks in range(2):
        for i in range(8):
            mfma(64+4*i, 20+4*ks, (192 if ks == 0 else 128)+4*i, "0" if ks == 0 else 64+4*i)
    for k in range(4): a(f"v_cvt_pk_bf16_f32 v{8+k}, v{64+8*k}, v{68+8*k}")
    a("s_mov_b64 exec, 0xffff")
    a(f"buffer_store_dwordx4 {q(8)}, v18, s[{S_WS}:{S_WS+3}], s{sK2} offen sc1")
    a("s_mov_b64 exec, -1")
    stamp("h4pub")
    a(f"s_cmp_ge_u32 s{sH}, 28\ns_cbranch_scc1 L_fin")
    a("s_waitcnt vmcnt(0)")
    a("s_branch L_b11")

    a.label("L_p45b")
    a(f"s_and_b32 s{sK0}, s{sW}, 3")
    a(f"v_lshrrev_b32 v4, 3, v{vI}\nv_lshlrev_b32 v4, 3, v4\nv_add_u32 v4, v4, v{vS}\nv_lshlrev_b32 v4, 15, v4\nv_and_b32 v5, 7, v{vI}\nv_lshl_add_u32 v6, v5, 4, v4")
    a(f"s_lshl_b32 s{sT0}, s{sK0}, 20\ns_lshl_b32 s{sT1}, s{sFS}, 7\ns_add_u32 s{sT0}, s{sT0}, s{sT1}")
    for gg in range(2):
        for r in range(8):
            a(f"s_add_u32 s{sT1}, s{sT0}, {(64*gg+16*(r>>2)+(r&3))*8192}")
            a(f"buffer_load_dwordx4 {q(128+32*gg+4*r)}, v6, s[{S_WUV}:{S_WUV+3}], s{sT1} offen{nt}")
    a(f"v_lshlrev_b32 v16, 10, v{vS}\nv_lshl_add_u32 v16, v{vI}, 4, v16")
    a(f"v_and_b32 v4, 7, v{vI}\nv_lshl_add_u32 v4, v4, 2, v{vS}\nv_lshlrev_b32 v17, 9, v4")
    a(f"s_lshl_b32 s{sK1}, s{sH}, 2\ns_add_u32 s{sK1}, s{sK1}, s{sB45}\ns_lshl_b32 s{sK1}, s{sK1}, 15\ns_lshl_b32 s{sT1}, s{sK0}, 8\ns_add_u32 s{sK1}, s{sK1}, s{sT1}\ns_add_u32 s{sK1}, s{sK1}, {WS_O}")
    a(f"s_lshl_b32 s{sK2}, s{sB45}, 14\ns_lshl_b32 s{sT1}, s{sH}, 4\ns_add_u32 s{sK2}, s{sK2}, s{sT1}\ns_add_u32 s{sK2}, s{sK2}, {WS_REC}")
    def h3_loads():
        a(f"buffer_load_dwordx4 {q(96)}, v17, s[{S_WS}:{S_WS+3}], s{sK2} offen sc1")
        for t in range(8):
            a(f"s_add_u32 s{sT1}, s{sK1}, {t*4096}")
            a(f"buffer_load_dwordx4 {q(64+4*t)}, v16, s[{S_WS}:{S_WS+3}], s{sT1} offen sc1")
    a("s_waitcnt vmcnt(16)")
    stamp("drain")
    a("s_barrier")
    stamp("b8")
    h3_loads()
    stamp("h3iss")
    a(f"v_lshlrev_b32 v6, 13, v{vS}\nv_lshl_add_u32 v6, v{vI}, 4, v6")
    a(f"s_lshl_b32 s{sT0}, s{sFS}, 15\ns_lshl_b32 s{sT1}, s{sK0}, 8\ns_add_u32 s{sT0}, s{sT0}, s{sT1}")
    for r4 in range(2):
        for r in range(4):
            a(f"buffer_load_dwordx4 {q(224+16*r4+4*r)}, v6, s[{S_WD}:{S_WD+3}], s{sT0} offen offset:{1024*r}{nt}")
        if r4 == 0: a(f"s_add_u32 s{sT0}, s{sT0}, 4096")
    a(f"v_and_b32 v4, 1, v{vI}\nv_lshlrev_b32 v4, 4, v4\nv_mov_b32 v5, 0xffff\nv_lshlrev_b32 v4, v4, v5\nv_bfe_u32 v5, v{vI}, 1, 2")
    for k in range(4): a(f"v_cmp_eq_u32 vcc, {k}, v5\nv_cndmask_b32 v{12+k}, 0, v4, vcc")
    a(f"s_lshl_b32 s{sT0}, s{sK0}, 8\ns_add_u32 s{sT0}, s{sT0}, {L_CS}")
    a(f"v_and_b32 v4, 1, v{vS}\nv_lshlrev_b32 v4, 3, v4\nv_lshl_add_u32 v4, v{vI}, 4, v4\nv_add_u32 v18, s{sT0}, v4")
    a(f"v_and_b32 v4, 4, v{vI}\nv_add_u32 v4, v4, v{vS}\nv_lshl_add_u32 v19, v4, 4, s{sT0}")
    a(f"s_lshl_b32 s{sT0}, s{sK0}, 9\ns_add_u32 s{sT0}, s{sT0}, {L_CP}")
    a(f"v_lshrrev_b32 v4, 3, v{vI}\nv_lshlrev_b32 v4, 8, v4\nv_and_b32 v5, 7, v{vI}\nv_lshl_add_u32 v4, v5, 5, v4\nv_lshrrev_b32 v5, 1, v{vS}\nv_lshl_add_u32 v4, v5, 4, v4\nv_add_u32 v20, s{sT0}, v4")
    a(f"v_mov_b32 v22, {L_VAL}\nv_lshl_add_u32 v21, s{sK0}, 2, v22")
    stamp("dniss")
    a("s_waitcnt vmcnt(25)")
    stamp("wuv0")
    transpose(128, 192)
    a("s_waitcnt vmcnt(17)")
    transpose(160, 128)
    stamp("wuv")
    a("s_waitcnt vmcnt(16)")
    stamp("rec")
    a.label("L_h3calc")
    a("v_mov_b32 v24, v96")
    for c in ("quad_perm:[1,0,3,2]", "quad_perm:[2,3,0,1]", "row_half_mirror"): dpp("v_max_f32", 24, 24, 24, c)
    a(f"v_bitop3_b32 v26, v96, v97, v98 bitop3:0x96\nv_xor_b32 v27, s{sTAG}, v99")
    swapred("v_max_f32", (24,), (25,), 16)
    swapred("v_max_f32", (24,), (25,), 32)
    a("v_sub_f32 v24, v96, v24\nv_exp_f32 v24, v24\nv_cmp_ne_u32 vcc, 0, v27\nv_mul_f32 v25, v24, v97")
    a(f"s_cmp_lg_u64 vcc, 0\ns_cselect_b32 s{sT2}, 1, 0")
    for c in ("quad_perm:[1,0,3,2]", "quad_perm:[2,3,0,1]", "row_half_mirror"): dpp("v_add_f32", 25, 25, 25, c)
    swapred("v_add_f32", (25,), (27,), 16)
    swapred("v_add_f32", (25,), (27,), 32)
    a("v_rcp_f32 v25, v25\nv_mul_f32 v24, v24, v25\nv_cvt_pk_bf16_f32 v24, v24, v24")
    a(f"s_cmp_eq_u32 s{sK0}, 0\ns_cselect_b32 s{sEX}, 0x00ff00ff, 0\ns_mov_b32 s{sEX+1}, s{sEX}")
    a(f"v_cndmask_b32 v26, 0, v26, s[{sEX}:{sEX+1}]")
    for t in range(8):
        o = 100 + 4*(t&1)
        for k in range(4): a(f"v_and_b32_dpp v{o+k}, v24, v{12+k} row_newbcast:{t} row_mask:0xf bank_mask:0xf")
        a(f"s_waitcnt vmcnt({15-t})")
        mfma(8, o, 64+4*t, "0" if t == 0 else 8)
        a(f"v_bitop3_b32 v26, v26, v{64+4*t}, v{65+4*t} bitop3:0x96\nv_bitop3_b32 v26, v26, v{66+4*t}, v{67+4*t} bitop3:0x96")
    stamp("comb")
    a("v_cvt_pk_bf16_f32 v4, v8, v9\nv_cvt_pk_bf16_f32 v5, v10, v11")
    a(f"ds_write_b64 v18, {d(4)}")
    a(f"ds_read_b128 {q(100)}, v19\nds_read_b128 {q(104)}, v19 offset:128")
    for c in ("quad_perm:[1,0,3,2]", "quad_perm:[2,3,0,1]", "row_half_mirror", "row_mirror"): dpp("v_xor_b32", 26, 26, 26, c)
    for gg in range(2):
        a(f"s_waitcnt lgkmcnt({1-gg})")
        for i in range(8):
            mfma(64+4*i, 100+4*gg, (192 if gg == 0 else 128)+4*i, "0" if gg == 0 else 64+4*i)
        swapred("v_xor_b32", (26,), (27,), 16 if gg == 0 else 32)
    a(f"s_mul_i32 s{sT2}, s{sT2}, 0x5bd1e995\ns_lshl_b32 s{sT2}, s{sT2}, s{sK0}\nv_mov_b32 v27, s{sT2}\nv_cmp_eq_u32 vcc, 0, v27\nv_cndmask_b32 v26, v27, v26, vcc")
    a("ds_write_b32 v21, v26")
    a(f"s_mov_b32 s{sEX}, 0\ns_mov_b32 s{sEX+1}, -1")
    for k in range(4): a(f"v_cndmask_b32 v{8+k}, v{64+4*k}, v{80+4*k}, s[{sEX}:{sEX+1}]")
    a("s_mov_b32 exec_lo, 0xff0000ff\ns_mov_b32 exec_hi, 0xff0000ff")
    a(f"ds_write_b128 v20, {q(8)}")
    a("s_mov_b64 exec, -1")
    a("s_waitcnt lgkmcnt(0)")
    a("s_barrier")
    a(f"ds_read_b128 {q(28)}, v22")
    a("s_waitcnt lgkmcnt(0)")
    a("v_bitop3_b32 v28, v28, v29, v30 bitop3:0x96\nv_cmp_ne_u32 vcc, v28, v31\ns_cbranch_vccz L_h3okb")
    a(f"s_add_u32 s{sCNT}, s{sCNT}, 1\ns_cmp_ge_u32 s{sCNT}, {SPIN}\ns_cbranch_scc1 L_h3fail")
    a("s_barrier\ns_sleep 1")
    h3_loads()
    a("s_waitcnt vmcnt(0)\ns_branch L_h3calc")
    a.label("L_h3fail")
    a(f"v_mov_b32 v4, 3\nv_mov_b32 v5, 0\nbuffer_store_dword v4, v5, s[{S_DBG}:{S_DBG+3}], 0 offen offset:12")
    a.label("L_h3okb")
    a(f"s_cmp_ge_u32 s{sH}, 28\ns_cbranch_scc1 L_fin")
    a("s_waitcnt vmcnt(0)")
    transpose(224, 128)

    a.label("L_b11")
    a(f"v_lshlrev_b32 v16, 10, v{vS}\nv_lshl_add_u32 v16, v{vI}, 4, v16")
    a(f"s_and_b32 s{sK0}, s{sW}, 3\ns_lshr_b32 s{sK1}, s{sW}, 2")
    a(f"s_lshl_b32 s{sK2}, s{sB45}, 16\ns_lshl_b32 s{sT1}, s{sK1}, 15\ns_add_u32 s{sK2}, s{sK2}, s{sT1}\ns_lshl_b32 s{sT1}, s{sK0}, 8\ns_add_u32 s{sK2}, s{sK2}, s{sT1}\ns_add_u32 s{sK2}, s{sK2}, {WS_H4}")
    a(f"v_lshlrev_b32 v17, 4, v{vL}\ns_lshl_b32 s{sT2}, s{sB45}, 10")
    def h4_loads():
        for t in range(8):
            a(f"s_add_u32 s{sT1}, s{sK2}, {t*4096}")
            a(f"buffer_load_dwordx4 {q(64+4*t)}, v16, s[{S_WS}:{S_WS+3}], s{sT1} offen sc1")
    a("s_barrier")
    stamp("b11")
    a(f"buffer_load_dwordx4 {q(96)}, v17, s[{S_X}:{S_X+3}], s{sT2} offen")
    h4_loads()
    a(f"v_and_b32 v4, 1, v{vI}\nv_lshlrev_b32 v4, 4, v4\nv_mov_b32 v5, 0x3f80\nv_lshlrev_b32 v4, v4, v5\nv_bfe_u32 v5, v{vI}, 1, 2")
    for k in range(4): a(f"v_cmp_eq_u32 vcc, {k}, v5\nv_cndmask_b32 v{12+k}, 0, v4, vcc")
    a(f"s_lshl_b32 s{sT0}, s{sK1}, 11\ns_lshl_b32 s{sT1}, s{sK0}, 9\ns_add_u32 s{sT0}, s{sT0}, s{sT1}\ns_add_u32 s{sT0}, s{sT0}, {L_AP}")
    a(f"v_and_b32 v4, 1, v{vS}\nv_lshlrev_b32 v4, 4, v4\nv_lshl_add_u32 v4, v{vI}, 5, v4\nv_add_u32 v18, s{sT0}, v4")
    a(f"v_lshlrev_b32 v19, 5, v{vL}\nv_mov_b32 v20, {L_RETRY}")
    a(f"s_cmp_ge_u32 s{sW}, 4\ns_cbranch_scc1 L_f47")
    transpose(160, 128)
    transpose(224, 192)
    a(f"s_lshr_b32 s{sT0}, s{sW}, 1\ns_lshl_b32 s{sT1}, s{sT0}, 7")
    a(f"v_and_b32 v4, 12, v{vI}\nv_add_u32 v4, v4, v{vS}\nv_lshl_add_u32 v21, v4, 2, s{sT1}")
    a(f"s_lshl_b32 s{sT0}, s{sT0}, 10\ns_and_b32 s{sT1}, s{sW}, 1\ns_lshl_b32 s{sT1}, s{sT1}, 7\ns_add_u32 s{sT0}, s{sT0}, s{sT1}\ns_add_u32 s{sT0}, s{sT0}, {L_GP}")
    a(f"v_and_b32 v4, 3, v{vI}\nv_lshlrev_b32 v4, 5, v4\nv_lshl_add_u32 v4, v{vS}, 8, v4\nv_add_u32 v22, s{sT0}, v4")
    a(f"v_add_u32 v23, {L_HS}, v17")
    a(f"s_mov_b32 s{sK3}, 0x3f803f80")
    a("s_waitcnt vmcnt(8)")
    for k in range(4): a(f"v_lshlrev_b32 v{108+2*k}, 16, v{96+k}\nv_and_b32 v{109+2*k}, 0xffff0000, v{96+k}")
    def h4_reduce():
        for t in range(8):
            a(f"s_waitcnt vmcnt({7-t})")
            mfma(8, 12, 64+4*t, "0" if t == 0 else 8)
        a(f"ds_write_b128 v18, {q(8)}")
        a("s_waitcnt lgkmcnt(0)")
    a.label("L_h4a")
    h4_reduce()
    stamp("h4red")
    a("s_barrier")
    a(f"ds_read_b128 {q(24)}, v19 offset:{L_AP}\nds_read_b128 {q(28)}, v19 offset:{L_AP+16}\nds_read_b128 {q(32)}, v19 offset:{L_AP+2048}\nds_read_b128 {q(36)}, v19 offset:{L_AP+2064}")
    a("s_waitcnt lgkmcnt(0)")
    for k in range(8): a(f"v_add_f32 v{24+k}, v{24+k}, v{32+k}")
    for k in range(4): a(f"v_cvt_pk_bf16_f32 v{32+k}, v{24+2*k}, v{25+2*k}")
    for k in range(4): a(f"v_lshlrev_b32 v{24+2*k}, 16, v{32+k}\nv_and_b32 v{25+2*k}, 0xffff0000, v{32+k}")
    for k in range(8): a(f"v_add_f32 v{24+k}, v{24+k}, v{108+k}")
    for k in range(4): a(f"v_cvt_pk_bf16_f32 v{32+k}, v{24+2*k}, v{25+2*k}")
    a(f"v_dot2_f32_bf16 v40, v32, s{sK3}, 0\nv_dot2_f32_bf16 v41, v32, v32, 0")
    for k in range(1, 4): a(f"v_dot2_f32_bf16 v40, v{32+k}, s{sK3}, v40\nv_dot2_f32_bf16 v41, v{32+k}, v{32+k}, v41")
    a(f"ds_write_b128 v23, {q(32)}")
    for c in ("quad_perm:[1,0,3,2]", "quad_perm:[2,3,0,1]", "row_half_mirror", "row_mirror"):
        dpp("v_add_f32", 40, 40, 40, c); dpp("v_add_f32", 41, 41, 41, c)
    swapred("v_add_f32", (40, 41), (42, 43), 16)
    swapred("v_add_f32", (40, 41), (42, 43), 32)
    a("v_cmp_u_f32 vcc, v40, v40\ns_cbranch_vccz L_h4ok")
    a(f"s_add_u32 s{sCNT}, s{sCNT}, 1\ns_cmp_ge_u32 s{sCNT}, {SPIN}\ns_cbranch_scc1 L_h4fail")
    a("v_mov_b32 v4, 1\nds_write_b32 v20, v4\ns_waitcnt lgkmcnt(0)\ns_barrier\ns_sleep 1")
    h4_loads()
    a("s_branch L_h4a")
    a.label("L_h4fail")
    a(f"v_mov_b32 v4, 4\nv_mov_b32 v5, 0\nbuffer_store_dword v4, v5, s[{S_DBG}:{S_DBG+3}], 0 offen offset:16")
    a.label("L_h4ok")
    stamp("h4ok")
    ln_stats(40, 41, 42)
    ln_apply(32, 4, 40, 41, 24)
    for gg in range(2):
        for k in range(4): a(f"ds_bpermute_b32 v{100+4*gg+k}, v21, v{32+k} offset:{64*gg}")
    a("v_mov_b32 v4, 0\nds_write_b32 v20, v4")
    for gg in range(2):
        a(f"s_waitcnt lgkmcnt({5-4*gg})")
        for i in range(8):
            mfma(64+4*i, 100+4*gg, (128 if gg == 0 else 192)+4*i, "0" if gg == 0 else 64+4*i)
    a("s_mov_b32 exec_lo, 0x00f0000f\ns_mov_b32 exec_hi, 0xf0000f00")
    for k in range(4): a(f"ds_write2_b32 v22, v{64+8*k}, v{68+8*k} offset0:{2*k} offset1:{2*k+1}")
    a("s_waitcnt lgkmcnt(0)")
    a("s_barrier")
    a("s_branch L_fin")
    a.label("L_f47")
    a(f"v_lshlrev_b32 v21, 2, v{vL}")
    a(f"s_lshl_b32 s{sT0}, s{sK0}, 6\ns_add_u32 s{sT0}, s{sT0}, {L_AS}")
    a(f"v_and_b32 v4, 31, v{vL}\nv_lshl_add_u32 v22, v4, 1, s{sT0}\nv_lshl_add_u32 v23, v{vS}, 4, s{sT0}")
    a(f"s_lshl_b32 s{sK3}, s{sB45}, 6\ns_add_u32 s{sK3}, s{sK3}, s{sFS}\ns_lshl_b32 s{sK3}, s{sK3}, 10\ns_lshl_b32 s{sT1}, s{sK0}, 8\ns_add_u32 s{sK3}, s{sK3}, s{sT1}\ns_add_u32 s{sK3}, s{sK3}, {WS_H5}")
    a.label("L_h4b")
    h4_reduce()
    a("s_barrier")
    a("s_barrier")
    a("ds_read_b32 v4, v20")
    for p in range(8): a(f"ds_read_b32 v{24+p}, v21 offset:{L_GP+256*p}")
    a("s_waitcnt lgkmcnt(8)")
    a(f"v_readfirstlane_b32 s{sT0}, v4\ns_cmp_eq_u32 s{sT0}, 0\ns_cbranch_scc1 L_h4okb")
    a("s_waitcnt lgkmcnt(0)\ns_sleep 1")
    h4_loads()
    a("s_branch L_h4b")
    a.label("L_h4okb")
    stamp("b13")
    a("s_waitcnt lgkmcnt(0)")
    a("v_add_f32 v24, v24, v25\nv_add_f32 v26, v26, v27\nv_add_f32 v28, v28, v29\nv_add_f32 v30, v30, v31\nv_add_f32 v24, v24, v26\nv_add_f32 v28, v28, v30\nv_add_f32 v24, v24, v28")
    bfround(24, 24)
    a("v_mov_b32 v25, v24\nv_permlane32_swap_b32 v24, v25")
    k1 = -2.0 * math.sqrt(2.0/math.pi) * math.log2(math.e)
    a(f"v_mul_f32 v26, v24, v24\nv_mov_b32 v27, {f2u(k1)}\nv_fmamk_f32 v26, v26, {f2u(k1*0.044715)}, v27\nv_mul_f32 v26, v26, v24")
    a("v_exp_f32 v26, v26\nv_add_f32 v26, 1.0, v26\nv_rcp_f32 v26, v26\nv_mul_f32 v26, v26, v24")
    bfround(26, 26)
    a("v_mul_f32 v26, v26, v25\nv_cvt_pk_bf16_f32 v26, v26, v26")
    a(f"ds_write_b16 v22, v26\nds_read_b128 {q(28)}, v23")
    a("s_waitcnt lgkmcnt(0)")
    for i in range(8): mfma(64+4*i, 28, 128+4*i, "0")
    for k in range(4): a(f"v_cvt_pk_bf16_f32 v{8+k}, v{64+8*k}, v{68+8*k}")
    a("s_mov_b64 exec, 0xffff")
    a(f"buffer_store_dwordx4 {q(8)}, v17, s[{S_WS}:{S_WS+3}], s{sK3} offen sc1")
    a("s_mov_b64 exec, -1")
    stamp("h5pub")
    a(f"s_cmp_ge_u32 s{sFS}, 8\ns_cbranch_scc1 L_fin")
    a(f"s_cmp_lg_u32 s{sW}, 4\ns_cbranch_scc1 L_fin")
    a(f"v_lshrrev_b32 v4, 3, v{vI}\nv_lshl_add_u32 v4, v{vS}, 1, v4\nv_lshlrev_b32 v4, 10, v4\nv_and_b32 v5, 7, v{vI}\nv_lshl_add_u32 v16, v5, 4, v4")
    a(f"s_lshl_b32 s{sK2}, s{sB45}, 16\ns_lshl_b32 s{sT1}, s{sFS}, 7\ns_add_u32 s{sK2}, s{sK2}, s{sT1}\ns_add_u32 s{sK2}, s{sK2}, {WS_H5}")
    a(f"v_and_b32 v4, 1, v{vS}\nv_lshlrev_b32 v4, 3, v4\nv_lshl_add_u32 v18, v5, 4, v4\ns_add_u32 s{sT0}, s{sT1}, {L_HS}\nv_add_u32 v19, s{sT0}, v18")
    a(f"ds_read_b64 {d(20)}, v19")
    a(f"s_lshl_b32 s{sK3}, s{sB45}, 10\ns_add_u32 s{sK3}, s{sK3}, s{sT1}")
    a("s_waitcnt vmcnt(0)")
    stamp("h5drain")
    a.label("L_h5")
    for t in range(7):
        a(f"s_add_u32 s{sT1}, s{sK2}, {t*8192}")
        a(f"buffer_load_dwordx4 {q(64+4*t)}, v16, s[{S_WS}:{S_WS+3}], s{sT1} offen sc1")
    a("s_waitcnt lgkmcnt(0)")
    a("v_lshlrev_b32 v24, 16, v20\nv_and_b32 v25, 0xffff0000, v20\nv_lshlrev_b32 v26, 16, v21\nv_and_b32 v27, 0xffff0000, v21")
    for t in range(7):
        a(f"s_waitcnt vmcnt({6-t})")
        mfma(8, 12, 64+4*t, "0" if t == 0 else 8)
    for k in range(4): dpp("v_add_f32", 8+k, 8+k, 8+k, "row_ror:8")
    a(f"v_cmp_u_f32 vcc, v8, v9\nv_cmp_u_f32 s[{sEX}:{sEX+1}], v10, v11\ns_or_b64 vcc, vcc, s[{sEX}:{sEX+1}]\ns_cbranch_vccz L_h5ok")
    a("s_sleep 1")
    spin_check("L_h5", 5)
    a.label("L_h5ok")
    a("v_cvt_pk_bf16_f32 v4, v8, v9\nv_cvt_pk_bf16_f32 v5, v10, v11")
    a("v_lshlrev_b32 v8, 16, v4\nv_and_b32 v9, 0xffff0000, v4\nv_lshlrev_b32 v10, 16, v5\nv_and_b32 v11, 0xffff0000, v5")
    for k in range(4): a(f"v_add_f32 v{8+k}, v{8+k}, v{24+k}")
    a("v_cvt_pk_bf16_f32 v4, v8, v9\nv_cvt_pk_bf16_f32 v5, v10, v11")
    a("s_mov_b32 exec_lo, 0x00ff00ff\ns_mov_b32 exec_hi, 0")
    a(f"buffer_store_dwordx2 {d(4)}, v18, s[{S_OUT}:{S_OUT+3}], s{sK3} offen")
    a("s_cmp_lg_u32 s2, 0\ns_cbranch_scc1 L_fin")
    a("s_mov_b64 exec, 1")
    a(f"v_mov_b32 v6, s{sTAG}\nv_mov_b32 v7, 0\nbuffer_store_dword v6, v7, s[{S_WS}:{S_WS+3}], 0 offen sc1")
    a("s_branch L_fin")

    a.label("L_h2retry")
    a(f"s_add_u32 s{sCNT}, s{sCNT}, 1\ns_cmp_ge_u32 s{sCNT}, {SPIN}\ns_cbranch_scc1 L_h2fail")
    a("s_waitcnt lgkmcnt(0)")
    for k in range(8): a(f"v_subrev_u32 v{24+k}, 0x10000, v{24+k}")
    a("s_barrier")
    for ks in range(16): a(f"ds_read_b128 {q(64+4*ks)}, v{16+(ks&3)} offset:{(ks>>2)*256}")
    a(f"s_cmp_lg_u32 s{sW}, 1\ns_cbranch_scc1 L_nofl")
    a("v_mov_b32 v4, 0\nds_write_b32 v38, v4\ns_sleep 1")
    qa_loads()
    a("s_waitcnt vmcnt(0)\ns_branch L_nofl")
    a.label("L_h2fail")
    a(f"v_mov_b32 v4, 2\nv_mov_b32 v5, 0\nbuffer_store_dword v4, v5, s[{S_DBG}:{S_DBG+3}], 0 offen offset:8")
    a("s_branch L_h2ok")

    a.label("L_fin")
    if cfg.echo:
        stamp("end")
        a(f"s_cmp_lg_u32 s2, 0\ns_cbranch_scc1 L_end\ns_cmp_lg_u32 s{sW}, {cfg.echo_w}\ns_cbranch_scc1 L_end")
        a("s_memrealtime s[90:91]\ns_waitcnt lgkmcnt(0)")
        a(f"s_sub_u32 s92, s{sST+2}, s{sST}\ns_lshl_b32 s92, s92, 1\ns_min_u32 s92, s92, 20000")
        a.label("L_echo")
        a("s_memrealtime s[94:95]\ns_waitcnt lgkmcnt(0)\ns_sub_u32 s94, s94, s90\ns_cmp_lt_u32 s94, s92\ns_cbranch_scc1 L_echo")
    elif cfg.stamps:
        stamp("end")
        a("s_nop 0")
        a("s_mov_b64 exec, -1\ns_waitcnt lgkmcnt(0)")
        for k in range(10): a(f"v_writelane_b32 v4, s{sST+2*k}, {k}")
        a(f"v_writelane_b32 v4, s{sCNT}, 10\nv_writelane_b32 v4, s81, 11")
        a(f"s_lshl_b32 s{sT0}, s2, 3\ns_add_u32 s{sT0}, s{sT0}, s{sW}\ns_lshl_b32 s{sT0}, s{sT0}, 6\ns_add_u32 s{sT0}, s{sT0}, {WS_STAMP}")
        a(f"v_lshlrev_b32 v5, 2, v{vL}\ns_mov_b64 exec, 0xffff")
        a(f"buffer_store_dword v4, v5, s[{S_WS}:{S_WS+3}], s{sT0} offen")
        if cfg.dbgstamps:
            a(f"s_not_b32 s{sT0}, s{sST}\nv_writelane_b32 v4, s{sT0}, 0\ns_mov_b64 exec, 0x3ff")
            a(f"buffer_atomic_umax v4, v5, s[{S_DBG}:{S_DBG+3}], 0 offen sc1")
    a.label("L_end")
    a("s_endpgm")
    a.label("L_codeend")
    lines, added = hz.pad(a.lines)
    hdr = open("sequential_preLN__compressed_kv_cla__geglu_ffn__decode.s.ref").read().split("; Override launch")[0]
    s = hdr + f"; @launch grid=(256,1,1) block=(512,1,1) lds={LDS_BYTES}\n" + TARGET + "\n".join(lines) + "\n" + kernel_desc(KNAME, 256)
    return s, added

if __name__ == "__main__":
    out = sys.argv[1] if len(sys.argv) > 1 else "k.s"
    class C(Cfg): pass
    for kv in sys.argv[2:]:
        k, v = kv.split("=")
        setattr(C, k, eval(v))
    s, added = gen(C)
    open(out, "w").write(s)
    print("written", out, "nops added", added, "lines", s.count("\n"))
```

```python
import sys, struct, math
from asmlib import *
import hz

def f2u(x): return struct.unpack("<I", struct.pack("<f", x))[0]

WS_EPOCH = 0
WS_FLAGS = 0x1000
WS_H1    = 0x10000
WS_H2    = 0x100000
WS_O     = 0x200000
WS_REC   = 0x600000
WS_H4    = 0x700000
WS_H5    = 0x740000
WS_STAMP = 0x800000
L_QA = 131072
MB = 147456
L_MX = MB
L_LS = MB+256
L_PT = L_LS+1280
L_QS = L_PT+4096
L_SIG = L_QS+1088
L_CS = L_SIG+16
L_CP = L_CS+1024
LDS_BYTES = L_CP+8*272
L_AP = 0; L_GP = 4096; L_HS = 8192; L_AS = 9216

S_X, S_WQ, S_WUK, S_CKV, S_WS, S_WUV, S_WO, S_WGU, S_WD, S_OUT, S_DBG = 4, 8, 12, 16, 20, 24, 28, 32, 36, 40, 44
P16, P8, PWS = 48, 64, 72
sW = 3
sH, sJ, sTAG, sPLO, sPHI, sCNT, sB45, sFS = 74, 75, 76, 77, 78, 79, 80, 81
sT0, sT1, sT2, sT3 = 82, 83, 84, 85
sST = 86
sM = 48
sK0, sK1, sK2, sK3 = 56, 57, 58, 59
sEX = 60
sC, sEP, sDG = 62, 63, 64
SPIN = 200000

class Cfg:
    nt = " nt"
    nt2 = " nt"
    ntpf = ""
    stamps = False
    dbgstamps = False
    echo = False
    echo_w = 0
    codepf = True
    wn = 10
    ld_at = "pub"
    wuv1 = 8
    wo1 = 0
    pfwo = True
    pfF = True
    fullline = True
    rsleep = 2
    flag_first = True
    pfF_at = 'ost'
    h4sleep = 0
    prio = True

def gen(cfg=Cfg):
    a = Asm()
    nt, nt2 = cfg.nt, cfg.nt2
    vL, vI, vS = 1, 2, 3
    def stamp(name):
        if cfg.stamps and name in cfg.stamps:
            k = cfg.stamps.index(name)
            a(f"s_memrealtime s[{sST+2*k}:{sST+2*k+1}]")
    def q(r): return f"v[{r}:{r+3}]"
    def d(r): return f"v[{r}:{r+1}]"
    def srd(s): return f"s[{s}:{s+3}]"
    def base(s, p): a(f"s_mov_b32 s{s}, s{p}\ns_mov_b32 s{s+1}, s{p+1}")
    def transpose(src, dst):
        for dw in range(4):
            for k2 in range(4):
                r0 = src + 4*(2*k2) + dw; r1 = src + 4*(2*k2+1) + dw
                a(f"v_perm_b32 v{dst+4*(2*dw)+k2}, v{r1}, v{r0}, s{sPLO}")
                a(f"v_perm_b32 v{dst+4*(2*dw+1)+k2}, v{r1}, v{r0}, s{sPHI}")
    def mfma(dst, A, B, C):
        c = q(C) if isinstance(C, int) else C
        a(f"v_mfma_f32_16x16x32_bf16 {q(dst)}, {q(A)}, {q(B)}, {c}")
    def swapred(op, regs, tmps, which):
        for r, t in zip(regs, tmps): a(f"v_mov_b32 v{t}, v{r}")
        for r, t in zip(regs, tmps): a(f"v_permlane{which}_swap_b32 v{r}, v{t}")
        for r, t in zip(regs, tmps): a(f"{op} v{r}, v{r}, v{t}")
    def dpp(op, dst, src, other, ctl, bank="0xf"):
        a(f"{op}_dpp v{dst}, v{src}, v{other} {ctl} row_mask:0xf bank_mask:{bank}")
    Q1, Q2, HM, RM = "quad_perm:[1,0,3,2]", "quad_perm:[2,3,0,1]", "row_half_mirror", "row_mirror"
    def ln_stats(vs, vq):
        a(f"v_mul_f32 v{vs}, {f2u(-1.0/512)}, v{vs}")
        a(f"v_mul_f32 v{vq}, {f2u(1.0/512)}, v{vq}")
        a(f"v_fma_f32 v{vq}, -v{vs}, v{vs}, v{vq}")
        a(f"v_max_f32 v{vq}, 0, v{vq}")
        a(f"v_add_f32 v{vq}, {f2u(1e-5)}, v{vq}")
        a(f"v_rsq_f32 v{vq}, v{vq}")
        a(f"v_mul_f32 v{vs}, v{vs}, v{vq}")
    def pkfma(r, vs, vq):
        a(f"v_pk_fma_f32 {d(r)}, {d(r)}, {d(vs)}, {d(vs)} op_sel:[0,1,0] op_sel_hi:[1,1,0]")
    def fail(code):
        a(f"v_mov_b32 v4, {code}\nv_mov_b32 v5, 0\nbuffer_store_dword v4, v5, {srd(S_DBG)}, 0 offen offset:{4*code}")
    def spin_check(lbl_retry, code):
        a(f"s_add_u32 s{sCNT}, s{sCNT}, 1\ns_cmp_lt_u32 s{sCNT}, {SPIN}\ns_cbranch_scc1 {lbl_retry}")
        fail(code)
    def make_tag():
        a("s_waitcnt lgkmcnt(0)")
        a(f"s_mul_i32 s{sEP}, s{sTAG}, 0x9E3779B1\ns_add_u32 s{sEP}, s{sEP}, 0x7F4A7C15\ns_and_b32 s{sTAG}, s{sEP}, 0xBFFFBFFF")
    def rest_srds():
        base(S_CKV, P16+2); base(S_WS, PWS); base(S_WUV, P16+8); base(S_WO, P16+10); base(S_WD, P8+2); base(S_OUT, P8+4); base(S_DBG, P8+6)
        a(f"s_bitcmp1_b32 s{sW}, 0\ns_cselect_b32 s{S_WGU}, s{P8}, s{P16+14}\ns_cselect_b32 s{S_WGU+1}, s{P8+1}, s{P16+15}")
        a(f"s_load_dword s{sTAG}, s[{PWS}:{PWS+1}], {WS_EPOCH}")
    def consts():
        for g in range(4):
            m = 0x000F000F << (4*g)
            a(f"s_mov_b32 s{sM+2*g}, {m:#x}\ns_mov_b32 s{sM+2*g+1}, {m:#x}")

    kernel_begin(a, KNAME)
    a.label("L_code0")
    stamp("start")
    a("s_cmp_ge_u32 s2, 256\ns_cbranch_scc1 L_end")
    a(f"s_load_dwordx16 s[{P16}:{P16+15}], s[0:1], 0\ns_load_dwordx8 s[{P8}:{P8+7}], s[0:1], 64\ns_load_dwordx2 s[{PWS}:{PWS+1}], s[0:1], 96")
    a(f"v_lshrrev_b32 v4, 6, v0\nv_and_b32 v{vL}, 63, v0")
    a(f"v_readfirstlane_b32 s{sW}, v4")
    a(f"v_and_b32 v{vI}, 15, v0\nv_bfe_u32 v{vS}, v0, 4, 2")
    a(f"s_and_b32 s{sH}, s2, 7\ns_lshr_b32 s{sT0}, s2, 6\ns_lshl_b32 s{sT0}, s{sT0}, 3\ns_or_b32 s{sH}, s{sH}, s{sT0}")
    a(f"s_bfe_u32 s{sJ}, s2, 0x30003")
    for s, n in ((S_X,'x'),(S_WQ,'wq'),(S_WUK,'wuk'),(S_CKV,'ckv'),(S_WS,'ws'),(S_WUV,'wuv'),(S_WO,'wo'),(S_WGU,'wg'),(S_WD,'wd'),(S_OUT,'out'),(S_DBG,'dbg')):
        a(f"s_mov_b32 s{s+2}, {SIZE[n]}\ns_mov_b32 s{s+3}, 0x20000")
    a(f"s_mov_b32 s{sPLO}, 0x05040100\ns_mov_b32 s{sPHI}, 0x07060302\ns_mov_b32 s{sCNT}, 0")
    a(f"s_and_b32 s{sB45}, s{sJ}, 3")
    a(f"s_lshr_b32 s{sT0}, s{sJ}, 2\ns_lshl_b32 s{sFS}, s{sH}, 1\ns_add_u32 s{sFS}, s{sFS}, s{sT0}")
    if cfg.stamps:
        for k in range(1, 8): a(f"s_mov_b32 s{sST+2*k}, 0")
    a(f"s_cmp_lg_u32 s{sW}, 4\ns_cbranch_scc1 L_not0")

    if cfg.prio: a("s_setprio 3")
    a(f"v_and_b32 v4, 3, v{vL}\nv_lshlrev_b32 v4, 10, v4")
    a(f"v_lshrrev_b32 v5, 2, v{vL}\nv_lshl_add_u32 v5, v5, 6, v4")
    a(f"v_lshl_add_u32 v4, v{vS}, 4, v4")
    a(f"v_lshlrev_b32 v6, 16, v{vS}\nv_lshl_add_u32 v6, v{vI}, 4, v6")
    a(f"v_lshlrev_b32 v7, 13, v{vI}\nv_lshl_add_u32 v7, v{vS}, 4, v7")
    a(f"s_lshl_b32 s{sT2}, s{sJ}, 7")
    a(f"s_lshl_b32 s{sT0}, s{sJ}, 19\ns_lshl_b32 s{sT1}, s{sH}, 8\ns_add_u32 s{sT0}, s{sT0}, s{sT1}")
    a("s_waitcnt lgkmcnt(0)")
    stamp("karg")
    base(S_X, P16); base(S_WQ, P16+4)
    for k in range(4): a(f"buffer_load_dwordx4 {q(8+4*k)}, v5, {srd(S_X)}, 0 offen offset:{16*k}")
    for k in range(2): a(f"buffer_load_dwordx4 {q(24+4*k)}, v4, {srd(S_X)}, s{sT2} offen offset:{64*k}")
    for ks in range(2):
        for r in range(8):
            a(f"s_add_u32 s{sT1}, s{sT0}, {(32*ks+r)*8192}")
            a(f"buffer_load_dwordx4 {q(64+32*ks+4*r)}, v6, {srd(S_WQ)}, s{sT1} offen{nt}")
    base(S_WUK, P16+6)
    for n_ in range(4):
        for ks in range(4):
            a(f"buffer_load_dwordx4 {q(192+16*n_+4*ks)}, v7, {srd(S_WUK)}, s{sT0} offen offset:{64*ks}{nt}")
        if n_ < 3: a(f"s_add_u32 s{sT0}, s{sT0}, {16*8192}")
    stamp("w0_iss")
    if cfg.ld_at == "iss": a("s_barrier")
    rest_srds(); consts()
    def qa_pub_addr(dst):
        a(f"v_lshrrev_b32 v4, 2, v{vI}\nv_lshlrev_b32 v4, 1, v4\nv_lshrrev_b32 v5, 1, v{vS}\nv_add_u32 v4, v4, v5")
        a(f"s_lshl_b32 s{sT0}, s{sJ}, 3\ns_and_b32 s{sT1}, s{sH}, 15\ns_xor_b32 s{sT0}, s{sT0}, s{sT1}")
        a(f"v_xor_b32 v4, s{sT0}, v4\nv_lshlrev_b32 v4, 4, v4")
        a(f"v_and_b32 v5, 1, v{vS}\nv_lshl_add_u32 v4, v5, 3, v4")
        a(f"v_and_b32 v5, 3, v{vI}\nv_lshl_add_u32 v{dst}, v5, 15, v4")
        a(f"s_lshl_b32 s{sK3}, s{sH}, 10\ns_add_u32 s{sK3}, s{sK3}, {WS_H2}")
    a(f"s_mov_b32 s{sK0}, 0x3f803f80")
    a("v_mov_b32 v32, 0\nv_mov_b32 v33, 0")
    a("s_waitcnt vmcnt(34)")
    stamp("w0_x")
    for k in range(16):
        a(f"v_dot2_f32_bf16 v32, v{8+k}, s{sK0}, v32\nv_dot2_f32_bf16 v33, v{8+k}, v{8+k}, v33")
    for c in ("row_ror:4", "row_ror:8"):
        dpp("v_add_f32", 32, 32, 32, c); dpp("v_add_f32", 33, 33, 33, c)
    swapred("v_add_f32", (32, 33), (34, 35), 16)
    swapred("v_add_f32", (32, 33), (34, 35), 32)
    ln_stats(32, 33)
    a("s_waitcnt vmcnt(32)")
    for k in range(8): a(f"v_lshlrev_b32 v{8+2*k}, 16, v{24+k}\nv_and_b32 v{9+2*k}, 0xffff0000, v{24+k}")
    for k in range(8): pkfma(8+2*k, 32, 33)
    for k in range(8): a(f"v_cvt_pk_bf16_f32 v{24+k}, v{8+2*k}, v{9+2*k}")
    for g in range(4):
        for k in range(8):
            a(f"v_cndmask_b32 v{32+8*g+k}, 0, v{24+k}, s[{sM+2*g}:{sM+2*g+1}]")
    stamp("w0_ln")
    a(f"v_and_b32 v4, 1, v{vI}\nv_lshlrev_b32 v4, 4, v4\nv_mov_b32 v5, 0x3f80\nv_lshlrev_b32 v4, v4, v5\nv_and_b32 v5, 2, v{vI}")
    a("v_cmp_eq_u32 vcc, 0, v5\nv_cndmask_b32 v5, 0, v4, vcc\nv_cndmask_b32 v4, v4, 0, vcc")
    for g in range(4):
        a(f"v_cndmask_b32 v{168+4*g}, 0, v5, s[{sM+2*g}:{sM+2*g+1}]\nv_cndmask_b32 v{169+4*g}, 0, v4, s[{sM+2*g}:{sM+2*g+1}]")
        a(f"v_mov_b32 v{170+4*g}, 0\nv_mov_b32 v{171+4*g}, 0")
    qa_pub_addr(164)
    a(f"v_lshlrev_b32 v7, 4, v{vL}\nv_mov_b32 v186, {L_SIG}")
    a(f"v_lshlrev_b32 v166, 11, v{vS}\nv_lshl_add_u32 v166, v{vI}, 4, v166")
    a(f"v_lshlrev_b32 v167, 4, v{vI}\nv_lshl_add_u32 v167, v{vS}, 1, v167\nv_add_u32 v167, {L_QS}, v167")
    a(f"v_and_b32 v184, 3, v{vI}\nv_mul_u32_u24 v184, 272, v184\nv_lshl_add_u32 v184, v{vS}, 4, v184\nv_add_u32 v184, {L_QS}, v184")
    a(f"s_lshl_b32 s{sK1}, s{sH}, 14\ns_add_u32 s{sK1}, s{sK1}, {WS_H1}\ns_add_u32 s{sK2}, s{sK1}, 8192")
    a(f"s_lshl_b32 s{sT0}, s{sJ}, 11\ns_add_u32 s{sT0}, s{sT0}, s{sK1}")
    make_tag()
    a(f"v_mov_b32 v18, s{sTAG}\nv_mov_b32 v19, s{sTAG}\nv_mov_b32 v22, s{sTAG}\nv_mov_b32 v23, s{sTAG}")
    for ks in range(2):
        a(f"s_waitcnt vmcnt({24-8*ks})")
        if ks == 1: stamp("w0_wq")
        dst = 128 if ks == 0 else 64
        transpose(64+32*ks, dst)
        for g in range(4):
            for t in range(2):
                mfma(8+4*t, 32+8*g+4*ks, dst+4*(4*t+g), "0" if (ks == 0 and g == 0) else 8+4*t)
    for t in range(2):
        r = 8+4*t; o = 16+4*t
        a(f"v_cvt_pk_bf16_f32 v{o}, v{r}, v{r+1}\nv_cvt_pk_bf16_f32 v{o+1}, v{r+2}, v{r+3}")
        a(f"buffer_store_dwordx4 {q(o)}, v7, {srd(S_WS)}, s{sT0} offen offset:{1024*t} sc1")
    stamp("w0_pub")
    if cfg.ld_at == "pub": a("s_barrier")
    a("s_waitcnt vmcnt(0)")
    stamp("w0_drain")
    def h1_loads():
        for u in range(2):
            for pg in range(8):
                a(f"buffer_load_dwordx4 {q(64+32*u+4*pg)}, v166, {srd(S_WS)}, s{sK1+u} offen offset:{256*pg} sc1")
    h1_loads()
    if cfg.ld_at == "h1": a("s_barrier")
    a.label("L_h1")
    for u in range(2):
        for pg in range(8):
            n = 8*u+pg; r = 64+4*n
            a(f"s_waitcnt vmcnt({15-n})")
            mfma(8+4*(pg>>2), 168+4*(pg&3), r, "0" if (u == 0 and (pg&3) == 0) else 8+4*(pg>>2))
            if n == 0: a(f"v_xor_b32 v4, s{sTAG}, v{r+2}")
            else: a(f"v_bitop3_b32 v4, v{r+2}, s{sTAG}, v4 bitop3:0xbe")
    stamp("w0_h1")
    a("v_cmp_ne_u32 vcc, 0, v4\ns_cbranch_vccz L_h1ok")
    a(f"s_sleep {cfg.rsleep}")
    h1_loads()
    spin_check("L_h1", 1)
    a("s_waitcnt vmcnt(0)")
    a.label("L_h1ok")
    for t in range(2):
        for bp in range(2):
            a(f"v_cvt_pk_bf16_f32 v{16+2*t+bp}, v{8+4*t+2*bp}, v{8+4*t+2*bp+1}")
            a(f"ds_write_b16 v167, v{16+2*t+bp} offset:{272*(2*bp)+8*t}")
            a(f"ds_write_b16_d16_hi v167, v{16+2*t+bp} offset:{272*(2*bp+1)+8*t}")
    for ks in range(4): a(f"ds_read_b128 {q(32+4*ks)}, v184 offset:{64*ks}")
    a("ds_read_b32 v10, v186")
    a(f"s_mov_b32 s{sT1}, {WS_FLAGS}")
    for ks in range(4):
        a(f"s_waitcnt lgkmcnt({4-ks})")
        for n_ in range(4):
            mfma(48+4*n_, 192+16*n_+4*ks, 32+4*ks, "0" if ks == 0 else 48+4*n_)
    a(f"s_bfe_u32 s{sT0}, s2, 0x20005\ns_lshl_b32 s{sT0}, s{sT0}, 15\ns_lshr_b32 s{sT2}, s2, 7\ns_lshl_b32 s{sT2}, s{sT2}, 14\ns_add_u32 s{sT0}, s{sT0}, s{sT2}\ns_add_u32 s{sK2}, s{sT0}, {WS_H2}")
    for n_ in range(4):
        a(f"s_mov_b64 exec, s[{sM+2*n_}:{sM+2*n_+1}]")
        a(f"v_cvt_pk_bf16_f32 v8, v{48+4*n_}, v{49+4*n_}\nv_cvt_pk_bf16_f32 v9, v{50+4*n_}, v{51+4*n_}")
    a("s_mov_b64 exec, -1")
    a.label("L_sig")
    a(f"s_waitcnt lgkmcnt(0)\nv_cmp_ne_u32 vcc, s{sTAG}, v10\ns_cbranch_vccz L_sigok")
    a("ds_read_b32 v10, v186\ns_branch L_sig")
    a.label("L_sigok")
    a(f"buffer_store_dwordx2 {d(8)}, v164, {srd(S_WS)}, s{sK3} offen sc1")
    stamp("w0_qapub")
    a.label("L_fl")
    a(f"buffer_load_dwordx4 {q(12)}, v7, {srd(S_WS)}, s{sT1} offen sc1")
    a("s_waitcnt vmcnt(0)")
    a(f"v_xor_b32 v4, s{sTAG}, v12")
    for k in range(1, 4): a(f"v_bitop3_b32 v4, v{12+k}, s{sTAG}, v4 bitop3:0xbe")
    a("v_cmp_ne_u32 vcc, 0, v4\ns_cbranch_vccz L_flok")
    a(f"s_sleep {cfg.rsleep}")
    spin_check("L_fl", 6)
    a.label("L_flok")
    stamp("w0_fl")
    a("s_barrier")
    def qa_loads():
        for r4 in range(4):
            a(f"s_add_u32 s{sT1}, s{sK2}, {r4*4096}")
            for r in range(4):
                a(f"buffer_load_dwordx4 {q(192+16*r4+4*r)}, v7, {srd(S_WS)}, s{sT1} offen offset:{1024*r} sc1")
    qa_loads()
    def pv_prep():
        a(f"s_and_b32 s{sK0}, s{sW}, 3")
        a(f"v_lshrrev_b32 v4, 2, v{vI}\nv_lshlrev_b32 v4, 1, v4\nv_lshl_add_u32 v4, v{vS}, 3, v4")
        a(f"v_bfe_u32 v5, v{vI}, 1, 1\nv_lshl_add_u32 v5, s{sK0}, 4, v5")
        a(f"v_and_b32 v6, 15, v4\nv_xor_b32 v5, v5, v6\nv_lshlrev_b32 v5, 4, v5\nv_lshl_add_u32 v4, v4, 10, v5")
        a(f"v_and_b32 v5, 1, v{vI}\nv_lshl_add_u32 v4, v5, 3, v4")
        for t in range(8):
            for aa in range(2):
                a(f"v_xor_b32 v{16+2*t+aa}, {(((2*t)|aa)<<4) | (aa<<10)}, v4")
        a(f"v_lshlrev_b32 v8, 4, v{vI}\nv_add_u32 v8, {L_MX}, v8\nv_lshl_add_u32 v9, v{vS}, 2, v8")
        a(f"v_mul_u32_u24 v10, 80, v{vI}\nv_lshl_add_u32 v10, v{vS}, 4, v10\nv_add_u32 v10, {L_LS}, v10")
        if cfg.fullline:
            a(f"v_and_b32 v4, 7, v{vI}\nv_lshlrev_b32 v4, 17, v4\nv_lshl_add_u32 v4, v{vS}, 4, v4\nv_lshrrev_b32 v5, 3, v{vI}\nv_lshl_add_u32 v4, v5, 6, v4\nv_lshl_add_u32 v11, s{sK0}, 8, v4")
        else:
            a(f"v_lshlrev_b32 v4, 17, v{vI}\nv_lshl_add_u32 v4, v{vS}, 4, v4\nv_lshl_add_u32 v11, s{sK0}, 8, v4")
        a(f"s_lshr_b32 s{sT0}, s2, 7\ns_lshl_b32 s{sT2}, s{sT0}, 21\ns_and_b32 s{sT1}, s2, 127\ns_lshl_b32 s{sT3}, s{sT1}, 10\ns_add_u32 s{sT2}, s{sT2}, s{sT3}\ns_add_u32 s{sM}, s{sT2}, {WS_O}\ns_add_u32 s{sM+1}, s{sM}, {8<<17}")
        a(f"s_lshl_b32 s{sT1}, s{sT1}, 1\ns_add_u32 s{sT0}, s{sT0}, s{sT1}\ns_lshl_b32 s{sT0}, s{sT0}, 2\ns_add_u32 s{sT0}, s{sT0}, s{sK0}\ns_lshl_b32 s{sT0}, s{sT0}, 8\ns_add_u32 s{sM+2}, s{sT0}, {WS_REC}")
        a(f"s_mov_b32 s{sM+3}, 0x800080")
    pv_prep()
    a(f"v_add_u32 v6, {L_QA}, v7\ns_mov_b32 s{sDG+1}, 0")
    a.label("L_qachk")
    for r in range(16):
        rr = 192+4*r
        a(f"s_waitcnt vmcnt({15-r})")
        a(f"ds_write_b128 v6, {q(rr)} offset:{1024*r}")
        if r == 0: a(f"v_max3_u32 v4, v{rr}, v{rr+1}, v{rr+2}\nv_max_u32 v4, v4, v{rr+3}")
        else: a(f"v_max3_u32 v4, v4, v{rr}, v{rr+1}\nv_max3_u32 v4, v4, v{rr+2}, v{rr+3}")
    a("v_cmp_eq_u32 vcc, -1, v4\ns_cbranch_vccz L_qaok")
    a(f"s_add_u32 s{sDG+1}, s{sDG+1}, 1\ns_cmp_ge_u32 s{sDG+1}, {SPIN}\ns_cbranch_scc1 L_qafail")
    a(f"s_sleep {cfg.rsleep}\ns_waitcnt lgkmcnt(0)")
    qa_loads()
    a("s_branch L_qachk")
    a.label("L_qafail")
    fail(2)
    a.label("L_qaok")
    if cfg.stamps: a(f"s_lshl_b32 s{sDG}, s{sDG+1}, 16\ns_add_u32 s{sDG}, s{sDG}, s{sCNT}")
    a("s_waitcnt lgkmcnt(0)")
    a("s_branch L_pv")

    a.label("L_not0")
    a(f"v_lshlrev_b32 v7, 4, v{vL}")
    a("s_waitcnt lgkmcnt(0)")
    base(S_X, P16)
    rest_srds()
    if cfg.stamps: a(f"s_mov_b32 s{sDG}, 0")
    a(f"s_cmp_lt_u32 s{sW}, 4\ns_cbranch_scc1 L_s03")
    a(f"s_cmp_lg_u32 s{sW}, 5\ns_cbranch_scc1 L_not1")
    if cfg.prio: a("s_setprio 3")
    a("v_mov_b32 v8, -1\nv_mov_b32 v9, -1\nv_mov_b32 v10, -1\nv_mov_b32 v11, -1")
    qa_pub_addr(12)
    a(f"buffer_store_dwordx2 {d(8)}, v12, {srd(S_WS)}, s{sK3} offen sc1")
    a(f"s_lshl_b32 s{sT0}, s{sB45}, 6\ns_add_u32 s{sT0}, s{sT0}, s{sFS}\ns_lshl_b32 s{sT0}, s{sT0}, 10\ns_add_u32 s{sT1}, s{sT0}, {WS_H4}")
    a(f"buffer_store_dwordx4 {q(8)}, v7, {srd(S_WS)}, s{sT1} offen sc1")
    a(f"s_add_u32 s{sT1}, s{sT0}, {WS_H5}")
    a(f"buffer_store_dwordx4 {q(8)}, v7, {srd(S_WS)}, s{sT1} offen sc1")
    if not cfg.flag_first: a("s_barrier")
    make_tag()
    a(f"v_mov_b32 v14, s{sTAG}\nv_mov_b32 v15, 0\nv_mov_b32 v16, {L_SIG}")
    a(f"s_lshl_b32 s{sT0}, s2, 2\ns_add_u32 s{sT0}, s{sT0}, {WS_FLAGS}")
    a("s_waitcnt vmcnt(0)")
    stamp("w1_rst")
    a("ds_write_b32 v16, v14")
    a("s_mov_b64 exec, 1")
    a(f"buffer_store_dword v14, v15, {srd(S_WS)}, s{sT0} offen sc1")
    a("s_mov_b64 exec, -1\ns_waitcnt lgkmcnt(0)")
    if cfg.flag_first: a("s_barrier")
    a("s_branch L_not1b")
    a.label("L_not1")
    if cfg.codepf:
        a(f"s_cmp_lg_u32 s{sW}, 6\ns_cbranch_scc1 L_nopf2")
        a(f"s_getpc_b64 s[{sEX}:{sEX+1}]")
        a.label("L_pc")
        a(f"s_sub_u32 s{sEX}, s{sEX}, L_pc-L_code0\ns_subb_u32 s{sEX+1}, s{sEX+1}, 0")
        a(f"s_lshr_b32 s{sT0}, s2, 3\ns_lshl_b32 s{sT0}, s{sT0}, 10")
        a(f"v_lshl_add_u32 v4, v{vL}, 7, s{sT0}")
        a(f"v_cmp_gt_u32 vcc, L_codeend-L_code0, v4")
        a(f"s_and_b64 exec, vcc, 0xff\ns_cbranch_execz L_nopf")
        a(f"global_load_dword v63, v4, s[{sEX}:{sEX+1}]")
        a.label("L_nopf")
        a("s_mov_b64 exec, -1")
        a.label("L_nopf2")
    a("s_barrier")
    make_tag()
    a.label("L_not1b")
    a("s_barrier")
    pv_prep()

    a.label("L_pv")
    if cfg.prio: a("s_setprio 1")
    def wuv_loads(lo, hi):
        if lo >= hi: return
        a(f"v_lshrrev_b32 v4, 3, v{vI}\nv_lshlrev_b32 v4, 3, v4\nv_add_u32 v4, v4, v{vS}\nv_lshlrev_b32 v4, 15, v4\nv_and_b32 v5, 7, v{vI}\nv_lshl_add_u32 v6, v5, 4, v4")
        a(f"s_lshl_b32 s{sT0}, s{sK0}, 20\ns_lshl_b32 s{sT1}, s{sFS}, 7\ns_add_u32 s{sT0}, s{sT0}, s{sT1}")
        for n in range(lo, hi):
            gg, r = n >> 3, n & 7
            a(f"s_add_u32 s{sT1}, s{sT0}, {(64*gg+16*(r>>2)+(r&3))*8192}")
            a(f"buffer_load_dwordx4 {q(192+4*n)}, v6, {srd(S_WUV)}, s{sT1} offen{nt2}")
    a("s_barrier")
    stamp("b4")
    if cfg.prio: a("s_setprio 0")
    wuv_loads(0, cfg.wuv1)
    for half in range(2):
        for kk in range(2*half, 2*half+2):
            for t in range(8):
                for aa in range(2):
                    a(f"ds_read_b64_tr_b16 {d(64+32*kk+4*t+2*aa)}, v{16+2*t+aa} offset:{(kk&1)*32768}")
        if half == 0:
            for k in range(16): a(f"v_add_u32 v{16+k}, 0x10000, v{16+k}")
    a(f"v_add_u32 v6, {L_PT}, v7\nv_mov_b32 v15, s{sTAG}")
    stamp("tr")
    if cfg.prio: a("s_setprio 1")
    a("s_waitcnt lgkmcnt(0)")
    a("s_barrier")
    stamp("b6")
    a(f"ds_read_b128 {q(32)}, v8")
    for kk in range(4): a(f"ds_read_b128 {q(16+4*kk)}, v6 offset:{kk*1024}")
    a(f"ds_read_b128 {q(36)}, v10\nds_read_b32 v40, v9")
    a("s_waitcnt lgkmcnt(6)")
    a("v_max3_i32 v12, v32, v33, v34\nv_max_i32 v12, v12, v35")
    def pscale(kk):
        a(f"v_sub_u32 v4, v12, v{32+kk}\nv_min_u32 v4, 255, v4\nv_mul_u32_u24 v4, s{sM+3}, v4")
        a(f"s_waitcnt lgkmcnt({5-kk})")
        for k in range(4): a(f"v_pk_sub_u16 v{16+4*kk+k}, v{16+4*kk+k}, v4 clamp")
    for kk in range(4): pscale(kk)
    a("s_waitcnt lgkmcnt(0)")
    a(f"v_pk_add_f32 {d(36)}, {d(36)}, {d(38)}\nv_sub_u32 v5, v40, v12\nv_add_f32 v13, v36, v37\nv_cvt_f32_i32 v12, v12\nv_ldexp_f32 v13, v13, v5")
    side = [lambda: swapred("v_add_f32", (13,), (5,), 16), lambda: swapred("v_add_f32", (13,), (5,), 32)]
    for kk in range(4):
        for t in range(8):
            mfma(32+4*t, 64+32*kk+4*t, 16+4*kk, "0" if kk == 0 else 32+4*t)
        if kk < 2: side[kk]()
    for tp in range(4):
        for u in range(2):
            r = 32+4*(2*tp+u)
            a(f"v_cvt_pk_bf16_f32 v{64+4*tp+2*u}, v{r}, v{r+1}\nv_cvt_pk_bf16_f32 v{65+4*tp+2*u}, v{r+2}, v{r+3}")
        if not cfg.fullline: a(f"buffer_store_dwordx4 {q(64+4*tp)}, v11, {srd(S_WS)}, s{sM} offen offset:{64*tp} sc1")
        elif tp & 1:
            A, B, o = 60+4*tp, 64+4*tp, 80+8*(tp>>1)
            for k in range(4): a(f"v_mov_b32 v{o+k}, v{A+k}\nv_mov_b32 v{o+4+k}, v{B+k}")
            for k in range(4): a(f"v_mov_b32_dpp v{o+k}, v{B+k} row_ror:8 row_mask:0xf bank_mask:0xc")
            a(f"buffer_store_dwordx4 {q(o)}, v11, {srd(S_WS)}, s{sM} offen offset:{128*(tp>>1)} sc1")
            for k in range(4): a(f"v_mov_b32_dpp v{o+4+k}, v{A+k} row_ror:8 row_mask:0xf bank_mask:0x3")
            a(f"buffer_store_dwordx4 {q(o+4)}, v11, {srd(S_WS)}, s{sM+1} offen offset:{128*(tp>>1)} sc1")
    stamp("ost")
    a("s_barrier")
    a("v_bitop3_b32 v14, v64, v65, v66 bitop3:0x96\nv_bitop3_b32 v5, v67, v68, v69 bitop3:0x96")
    for k in range(70, 78, 4): a(f"v_bitop3_b32 v14, v14, v{k}, v{k+1} bitop3:0x96\nv_bitop3_b32 v5, v5, v{k+2}, v{k+3} bitop3:0x96")
    a("v_bitop3_b32 v14, v14, v78, v79 bitop3:0x96\nv_xor_b32 v14, v14, v5")
    swapred("v_xor_b32", (14,), (5,), 16)
    swapred("v_xor_b32", (14,), (5,), 32)
    a("v_bitop3_b32 v14, v14, v12, v13 bitop3:0x96")
    a("s_mov_b64 exec, 0xffff")
    a(f"buffer_store_dwordx4 {q(12)}, v7, {srd(S_WS)}, s{sM+2} offen sc1")
    a("s_mov_b64 exec, -1")
    a("s_branch L_p45b")

    a.label("L_s03")
    for r in range(16): a(f"v_xor_b32 v{8+r}, {r<<4}, v7")
    a(f"s_lshl_b32 s{sT1}, s{sW}, 15\ns_and_b32 s{sT0}, s2, 127\ns_lshl_b32 s{sT0}, s{sT0}, 17\ns_add_u32 s{sT0}, s{sT0}, s{sT1}")
    a("s_barrier")
    for r in range(32):
        if r % 4 == 0: a(f"s_add_u32 m0, s{sT1}, {r*1024}\ns_add_u32 s{sT2}, s{sT0}, {r*1024}")
        if r >= cfg.wn: a(f"s_waitcnt vmcnt({cfg.wn-1})")
        a(f"buffer_load_dwordx4 v{8+(r&15)}, {srd(S_CKV)}, s{sT2} offen offset:{1024*(r&3)}{nt} lds")
    stamp("ld_iss")
    a("s_barrier")
    make_tag()
    for kk in range(4):
        a(f"v_add_u32 v4, {4*kk}, v{vS}\nv_xor_b32 v4, v4, v{vI}\nv_lshlrev_b32 v4, 4, v4\nv_lshl_add_u32 v4, v{vI}, 10, v4")
        a(f"v_add_u32 v{20+kk}, {L_QA}, v4")
        a(f"v_lshl_add_u32 v{16+kk}, s{sW}, 15, v4")
    a(f"v_lshlrev_b32 v24, 4, v{vI}\nv_lshl_add_u32 v24, s{sW}, 2, v24\nv_add_u32 v24, {L_MX}, v24")
    a(f"s_lshl_b32 s{sT0}, s{sW}, 10\ns_add_u32 s{sT0}, s{sT0}, {L_PT}")
    a(f"v_lshrrev_b32 v4, 1, v{vS}\nv_lshlrev_b32 v4, 8, v4\nv_lshl_add_u32 v4, v{vI}, 4, v4\nv_and_b32 v5, 1, v{vS}\nv_lshl_add_u32 v4, v5, 2, v4\nv_add_u32 v25, s{sT0}, v4")
    a(f"v_mul_u32_u24 v4, 80, v{vI}\nv_lshl_add_u32 v4, v{vS}, 2, v4\nv_lshl_add_u32 v4, s{sW}, 4, v4\nv_add_u32 v26, {L_LS}, v4")
    a(f"s_mov_b32 s{sC}, {f2u(math.log2(math.e) * 128 ** -0.5)}")
    a("s_waitcnt vmcnt(0)")
    stamp("ckv")
    for ks in range(16):
        for a2 in range(2): a(f"ds_read_b128 {q(64+8*ks+4*a2)}, v{16+(ks&3)} offset:{(ks>>2)*256+16384*a2}")
    a("s_waitcnt lgkmcnt(0)")
    a("s_barrier")
    if cfg.prio: a("s_setprio 2")
    for ks in range(16): a(f"ds_read_b128 {q(192+4*ks)}, v{20+(ks&3)} offset:{(ks>>2)*256}")
    for ks in range(16):
        a(f"s_waitcnt lgkmcnt({15-ks})")
        for a2 in range(2): mfma(8+4*a2, 64+8*ks+4*a2, 192+4*ks, "0" if ks == 0 else 8+4*a2)
    stamp("smf")
    a("v_max3_f32 v28, v8, v9, v10\nv_max3_f32 v29, v11, v12, v13\nv_max3_f32 v28, v28, v14, v15\nv_max_f32 v28, v28, v29")
    swapred("v_max_f32", (28,), (29,), 16)
    swapred("v_max_f32", (28,), (29,), 32)
    a(f"v_mul_f32 v28, s{sC}, v28\nv_ceil_f32 v28, v28")
    for k in range(8): a(f"v_fma_f32 v{8+k}, v{8+k}, s{sC}, -v28")
    a("v_cvt_i32_f32 v28, v28")
    for k in range(8): a(f"v_exp_f32 v{8+k}, v{8+k}")
    a("ds_write_b32 v24, v28")
    for a2 in range(2):
        a(f"v_cvt_pk_bf16_f32 v{30+2*a2}, v{8+4*a2}, v{10+4*a2}\nv_cvt_pk_bf16_f32 v{31+2*a2}, v{9+4*a2}, v{11+4*a2}")
        a(f"ds_write2_b32 v25, v{30+2*a2}, v{31+2*a2} offset0:{128*a2} offset1:{128*a2+2}")
    a(f"v_pk_add_f32 {d(8)}, {d(8)}, {d(10)}\nv_pk_add_f32 {d(12)}, {d(12)}, {d(14)}\nv_pk_add_f32 {d(8)}, {d(8)}, {d(12)}\nv_add_f32 v8, v8, v9")
    a("ds_write_b32 v26, v8")
    a("s_waitcnt lgkmcnt(0)")
    a("s_barrier")
    if cfg.prio: a("s_setprio 0")
    a(f"v_lshlrev_b32 v6, 13, v{vS}\nv_lshl_add_u32 v6, v{vI}, 4, v6")
    a(f"s_lshl_b32 s{sT0}, s{sFS}, 16\ns_lshl_b32 s{sT1}, s{sW}, 8\ns_add_u32 s{sT0}, s{sT0}, s{sT1}")
    def wo_loads(lo, hi):
        for n in range(lo, hi):
            ks, r4, r = n >> 3, (n >> 2) & 1, n & 3
            if r == 0 or n == lo: a(f"s_add_u32 s{sT1}, s{sT0}, {(32*ks+4*r4)*1024}")
            a(f"buffer_load_dwordx4 {q(192+4*n)}, v6, {srd(S_WO)}, s{sT1} offen offset:{1024*r}{nt2}")
    if cfg.pfwo:
        a(f"s_lshl_b32 s{sT2}, s{sFS}, 16\ns_lshl_b32 s{sT1}, s{sB45}, 14\ns_add_u32 s{sT2}, s{sT2}, s{sT1}\ns_lshl_b32 s{sT1}, s{sW}, 12\ns_add_u32 s{sT2}, s{sT2}, s{sT1}")
        a(f"v_lshlrev_b32 v5, 7, v{vL}\ns_mov_b32 exec_hi, 0")
        a(f"buffer_load_dword v63, v5, {srd(S_WO)}, s{sT2} offen{cfg.ntpf}")
        a("s_mov_b32 exec_hi, -1")
    wo_loads(0, cfg.wo1)
    a("s_barrier")
    wo_loads(cfg.wo1, 16)
    a(f"v_and_b32 v4, 7, v{vI}\nv_mul_u32_u24 v4, 272, v4\nv_lshrrev_b32 v5, 3, v{vI}\nv_lshl_add_u32 v4, v5, 7, v4\nv_lshl_add_u32 v4, v{vS}, 5, v4\nv_add_u32 v16, {L_CP}, v4")
    a(f"s_lshl_b32 s{sK3}, s{sB45}, 6\ns_add_u32 s{sK3}, s{sK3}, s{sFS}\ns_lshl_b32 s{sK3}, s{sK3}, 10\ns_lshl_b32 s{sT1}, s{sW}, 8\ns_add_u32 s{sK3}, s{sK3}, s{sT1}\ns_add_u32 s{sK2}, s{sK3}, {WS_H4}\ns_add_u32 s{sK3}, s{sK3}, {WS_H5}")
    a(f"s_lshl_b32 s{sK0}, s{sFS}, 15\ns_add_u32 s{sK0}, s{sK0}, s{sT1}\ns_add_u32 s{sK1}, s{sK0}, 4096")
    a("s_waitcnt vmcnt(8)")
    transpose(192, 128)
    a("s_waitcnt vmcnt(0)")
    transpose(224, 192)
    stamp("wo")
    a("s_barrier")
    a(f"ds_read_b128 {q(8)}, v16\nds_read_b128 {q(12)}, v16 offset:16")
    for hf in range(2):
        a(f"s_waitcnt lgkmcnt({1-hf})")
        for k in range(4): dpp("v_add_f32", 8+4*hf+k, 8+4*hf+k, 8+4*hf+k, Q1)
    for c in (Q2, HM):
        for k in range(8): dpp("v_add_f32", 8+k, 8+k, 8+k, c)
    stamp("b10")
    for k in range(4): a(f"v_cvt_pk_bf16_f32 v{20+k}, v{8+2*k}, v{9+2*k}")
    for k in range(4): a(f"v_mov_b32_dpp v{24+k}, v{20+k} row_ror:8 row_mask:0xf bank_mask:0xf")
    for ks in range(2):
        for i in range(8):
            mfma(64+4*i, 20+4*ks, (128 if ks == 0 else 192)+4*i, "0" if ks == 0 else 64+4*i)
    a("s_mov_b64 exec, 0xffff")
    for k in range(4): a(f"v_cvt_pk_bf16_f32 v{8+k}, v{64+8*k}, v{68+8*k}")
    a(f"buffer_store_dwordx4 {q(8)}, v7, {srd(S_WS)}, s{sK2} offen sc1")
    a("s_mov_b64 exec, -1")
    stamp("h4pub")
    a(f"s_cmp_ge_u32 s{sH}, 28\ns_cbranch_scc1 L_fin")
    for r4 in range(2):
        for r in range(4):
            a(f"buffer_load_dwordx4 {q(192+16*r4+4*r)}, v6, {srd(S_WD)}, s{sK0+r4} offen offset:{1024*r}{nt2}")
    a("s_waitcnt vmcnt(8)")
    if cfg.h4sleep: a(f"s_sleep {cfg.h4sleep}")
    a("s_branch L_b11")

    a.label("L_p45b")
    def pf_ffn():
        a(f"s_cmp_ge_u32 s{sK0}, 2\ns_cbranch_scc1 L_pfd")
        a(f"v_mul_u32_u24 v4, 3584, v{vL}\ns_mul_i32 s{sT2}, s{sJ}, {64*3584}\ns_lshl_b32 s{sT1}, s{sH}, 7\ns_add_u32 s{sT2}, s{sT2}, s{sT1}")
        a(f"buffer_load_dword v28, v4, {srd(S_WGU)}, s{sT2} offen{cfg.ntpf}")
        a("s_branch L_pfj")
        a.label("L_pfd")
        a(f"s_lshl_b32 s{sT1}, s{sH}, 16\ns_lshl_b32 s{sT2}, s{sJ}, 13\ns_add_u32 s{sT2}, s{sT2}, s{sT1}")
        a(f"v_lshlrev_b32 v4, 7, v{vL}\nv_lshl_add_u32 v4, s{sK0}, 30, v4\nv_xor_b32 v4, 0x80000000, v4")
        a(f"buffer_load_dword v28, v4, {srd(S_WD)}, s{sT2} offen{cfg.ntpf}")
        a.label("L_pfj")
    wuv_loads(cfg.wuv1, 16)
    npo = 0
    if cfg.pfF and cfg.pfF_at == "ost":
        pf_ffn(); npo = 1
    a(f"v_and_b32 v4, 7, v{vI}\nv_lshl_add_u32 v4, v4, 2, v{vS}\nv_lshlrev_b32 v17, 11, v4")
    a(f"s_lshl_b32 s{sK2}, s{sB45}, 16\ns_lshr_b32 s{sT1}, s{sH}, 4\ns_lshl_b32 s{sT1}, s{sT1}, 10\ns_add_u32 s{sK2}, s{sK2}, s{sT1}\ns_lshl_b32 s{sT1}, s{sK0}, 8\ns_add_u32 s{sK2}, s{sK2}, s{sT1}")
    a(f"s_and_b32 s{sT1}, s{sH}, 15\ns_lshl_b32 s{sT1}, s{sT1}, 4\ns_add_u32 s{sK2}, s{sK2}, s{sT1}\ns_add_u32 s{sK2}, s{sK2}, {WS_REC}")
    a(f"v_lshlrev_b32 v16, 10, v{vS}\nv_lshl_add_u32 v16, v{vI}, 4, v16")
    a(f"s_lshl_b32 s{sK1}, s{sH}, 2\ns_add_u32 s{sK1}, s{sK1}, s{sB45}\ns_lshl_b32 s{sK1}, s{sK1}, 15\ns_lshl_b32 s{sT1}, s{sK0}, 8\ns_add_u32 s{sK1}, s{sK1}, s{sT1}\ns_add_u32 s{sK1}, s{sK1}, {WS_O}")
    a(f"v_and_b32 v4, 1, v{vI}\nv_lshlrev_b32 v4, 4, v4\nv_mov_b32 v5, 0xffff\nv_lshlrev_b32 v4, v4, v5\nv_bfe_u32 v5, v{vI}, 1, 2")
    for k in range(4): a(f"v_cmp_eq_u32 vcc, {k}, v5\nv_cndmask_b32 v{12+k}, 0, v4, vcc")
    a(f"s_lshl_b32 s{sT0}, s{sK0}, 8\ns_add_u32 s{sT0}, s{sT0}, {L_CS}")
    a(f"v_and_b32 v4, 1, v{vS}\nv_lshlrev_b32 v4, 3, v4\nv_lshl_add_u32 v4, v{vI}, 4, v4\nv_add_u32 v18, s{sT0}, v4")
    a(f"v_and_b32 v4, 4, v{vI}\nv_add_u32 v4, v4, v{vS}\nv_lshl_add_u32 v19, v4, 4, s{sT0}")
    a(f"s_mul_i32 s{sT0}, s{sK0}, 544\ns_add_u32 s{sT0}, s{sT0}, {L_CP}")
    a(f"v_lshrrev_b32 v4, 3, v{vI}\nv_mul_u32_u24 v4, 272, v4\nv_and_b32 v5, 7, v{vI}\nv_lshl_add_u32 v4, v5, 5, v4\nv_lshrrev_b32 v5, 1, v{vS}\nv_lshl_add_u32 v4, v5, 4, v4\nv_add_u32 v20, s{sT0}, v4")
    a(f"s_mov_b32 s{sM}, 0x00ff00ff\ns_mov_b32 s{sM+1}, 0x00ff00ff\ns_mov_b32 s{sM+2}, 0\ns_mov_b32 s{sM+3}, -1\ns_mov_b32 s{sCNT}, 0")
    a(f"s_waitcnt vmcnt({min(8, 16-cfg.wuv1)+npo})")
    transpose(192, 128)
    def rec_load(): a(f"buffer_load_dwordx4 {q(96)}, v17, {srd(S_WS)}, s{sK2} offen sc1")
    rec_load()
    a(f"s_waitcnt vmcnt({1+npo})")
    transpose(224, 192)
    stamp("wuv")
    a(f"s_mov_b32 s{sDG+1}, 0")
    a.label("L_recpoll")
    a("s_waitcnt vmcnt(0)")
    a(f"v_cmp_ne_u32 vcc, s{sTAG}, v99\ns_cbranch_vccz L_recok")
    a(f"s_sleep {cfg.rsleep}")
    rec_load()
    a(f"s_add_u32 s{sDG+1}, s{sDG+1}, 1\ns_cmp_lt_u32 s{sDG+1}, {SPIN}\ns_cbranch_scc1 L_recpoll")
    fail(7)
    a("s_waitcnt vmcnt(0)")
    a.label("L_recok")
    stamp("rec")
    for t in range(8):
        a(f"s_add_u32 s{sT1}, s{sK1}, {t*4096}")
        a(f"buffer_load_dwordx4 {q(64+4*t)}, v16, {srd(S_WS)}, s{sT1} offen sc1")
    npf = 0
    if cfg.pfF and cfg.pfF_at == "rec":
        pf_ffn(); npf = 1
    stamp("h3iss")
    dpp("v_max_f32", 24, 96, 96, Q1)
    a(f"v_bitop3_b32 v26, v96, v97, v98 bitop3:0x96")
    dpp("v_max_f32", 24, 24, 24, Q2)
    a(f"v_cndmask_b32 v26, 0, v26, s[{sM}:{sM+1}]")
    dpp("v_max_f32", 24, 24, 24, HM)
    swapred("v_max_f32", (24,), (25,), 16)
    swapred("v_max_f32", (24,), (25,), 32)
    a("v_sub_f32 v24, v96, v24\nv_exp_f32 v24, v24\nv_mul_f32 v25, v24, v97")
    for c in (Q1, Q2, HM): dpp("v_add_f32", 25, 25, 25, c)
    swapred("v_add_f32", (25,), (27,), 16)
    swapred("v_add_f32", (25,), (27,), 32)
    a("v_rcp_f32 v25, v25\nv_mul_f32 v24, v24, v25\nv_cvt_pk_bf16_f32 v24, v24, v24")
    for t in range(8):
        for k in range(4): a(f"v_and_b32_dpp v{160+4*t+k}, v24, v{12+k} row_newbcast:{t} row_mask:0xf bank_mask:0xf")
    for t in range(8):
        a(f"s_waitcnt vmcnt({7-t+npf})")
        mfma(8, 160+4*t, 64+4*t, "0" if t == 0 else 8)
        if t: a(f"v_bitop3_b32 v26, v26, v{60+4*t}, v{61+4*t} bitop3:0x96\nv_bitop3_b32 v26, v26, v{62+4*t}, v{63+4*t} bitop3:0x96")
    a(f"v_bitop3_b32 v26, v26, v92, v93 bitop3:0x96\nv_bitop3_b32 v26, v26, v94, v95 bitop3:0x96")
    stamp("comb")
    dpp("v_xor_b32", 26, 26, 26, Q1)
    a("v_cvt_pk_bf16_f32 v4, v8, v9\nv_cvt_pk_bf16_f32 v5, v10, v11")
    a(f"ds_write_b64 v18, {d(4)}")
    a(f"ds_read_b128 {q(100)}, v19\nds_read_b128 {q(104)}, v19 offset:128")
    for c in (Q2, HM, RM): dpp("v_xor_b32", 26, 26, 26, c)
    swapred("v_xor_b32", (26,), (27,), 16)
    swapred("v_xor_b32", (26,), (27,), 32)
    a("v_cmp_ne_u32 vcc, 0, v26")
    for gg in range(2):
        a(f"s_waitcnt lgkmcnt({1-gg})")
        for i in range(8):
            mfma(32+4*i, 100+4*gg, (128 if gg == 0 else 192)+4*i, "0" if gg == 0 else 32+4*i)
        if gg == 0:
            a("s_cbranch_vccz L_h3ok")
            a(f"s_add_u32 s{sCNT}, s{sCNT}, 1\ns_cmp_ge_u32 s{sCNT}, {SPIN}\ns_cbranch_scc1 L_h3fail")
            a(f"s_sleep {cfg.rsleep}\ns_waitcnt lgkmcnt(0)")
            rec_load()
            a("s_branch L_recpoll")
            a.label("L_h3fail")
            fail(3)
            a.label("L_h3ok")
    for k in range(4): a(f"v_cndmask_b32 v{8+k}, v{32+4*k}, v{48+4*k}, s[{sM+2}:{sM+3}]")
    a("s_mov_b32 exec_lo, 0xff0000ff\ns_mov_b32 exec_hi, 0xff0000ff")
    a(f"ds_write_b128 v20, {q(8)}")
    a("s_mov_b64 exec, -1")
    a("s_waitcnt lgkmcnt(0)")
    a("s_barrier")
    if cfg.prio: a("s_setprio 0")
    a(f"v_and_b32 v4, 12, v{vI}\nv_add_u32 v4, v4, v{vS}\nv_mul_u32_u24 v4, {8*3584}, v4\nv_and_b32 v5, 3, v{vI}\nv_lshl_add_u32 v6, v5, 4, v4")
    a(f"s_lshr_b32 s{sT0}, s{sK0}, 1\ns_mul_i32 s{sT0}, s{sT0}, {256*3584}\ns_lshl_b32 s{sT1}, s{sFS}, 6\ns_add_u32 s{sT0}, s{sT0}, s{sT1}")
    a(f"s_cmp_ge_u32 s{sH}, 28\ns_cbranch_scc1 L_fin")
    for n in range(16):
        gg, r = n >> 3, n & 7
        a(f"s_add_u32 s{sT1}, s{sT0}, {(128*gg+r)*3584}")
        a(f"buffer_load_dwordx4 {q(192+4*n)}, v6, {srd(S_WGU)}, s{sT1} offen{nt2}")
    stamp("guiss")

    a.label("L_b11")
    a(f"v_lshlrev_b32 v16, 10, v{vS}\nv_lshl_add_u32 v16, v{vI}, 4, v16")
    a(f"s_and_b32 s{sK0}, s{sW}, 3\ns_lshr_b32 s{sK1}, s{sW}, 2")
    a(f"s_lshl_b32 s{sK2}, s{sB45}, 16\ns_lshl_b32 s{sT1}, s{sK1}, 15\ns_add_u32 s{sK2}, s{sK2}, s{sT1}\ns_lshl_b32 s{sT1}, s{sK0}, 8\ns_add_u32 s{sK2}, s{sK2}, s{sT1}\ns_add_u32 s{sK2}, s{sK2}, {WS_H4}")
    a(f"s_lshl_b32 s{sT2}, s{sB45}, 10\ns_add_u32 s{sT2}, s{sT2}, s{sT1}\ns_lshl_b32 s{sT0}, s{sK1}, 12\ns_add_u32 s{sT2}, s{sT2}, s{sT0}")
    a(f"v_lshlrev_b32 v17, 12, v{vS}\nv_lshl_add_u32 v17, v{vI}, 4, v17")
    def h4_loads():
        for t in range(8):
            a(f"s_add_u32 s{sT1}, s{sK2}, {t*4096}")
            a(f"buffer_load_dwordx4 {q(64+4*t)}, v16, {srd(S_WS)}, s{sT1} offen sc1")
    a("s_barrier")
    stamp("b11")
    a(f"buffer_load_dwordx4 {q(96)}, v17, {srd(S_X)}, s{sT2} offen")
    h4_loads()
    a(f"v_and_b32 v4, 1, v{vI}\nv_lshlrev_b32 v4, 4, v4\nv_mov_b32 v5, 0x3f80\nv_lshlrev_b32 v4, v4, v5\nv_bfe_u32 v5, v{vI}, 1, 2")
    for k in range(4): a(f"v_cmp_eq_u32 vcc, {k}, v5\nv_cndmask_b32 v{12+k}, 0, v4, vcc")
    a(f"s_lshl_b32 s{sT0}, s{sK1}, 11\ns_lshl_b32 s{sT1}, s{sK0}, 8\ns_add_u32 s{sT0}, s{sT0}, s{sT1}\ns_add_u32 s{sT0}, s{sT0}, {L_AP}")
    a(f"v_and_b32 v4, 1, v{vS}\nv_lshlrev_b32 v4, 10, v4\nv_lshl_add_u32 v4, v{vI}, 4, v4\nv_add_u32 v18, s{sT0}, v4")
    a(f"s_mov_b32 s{sDG+1}, 0")
    a("s_waitcnt vmcnt(9)")
    transpose(192, 128)
    def h4_reduce(sfx):
        a.label("L_h4" + sfx)
        a("s_waitcnt vmcnt(8)")
        mfma(8, 12, 96, "0")
        for t in range(8):
            a(f"s_waitcnt vmcnt({7-t})")
            mfma(8, 12, 64+4*t, 8)
        a(f"v_cmp_u_f32 vcc, v8, v9\nv_cmp_u_f32 s[{sEX}:{sEX+1}], v10, v11")
        a(f"ds_write_b128 v18, {q(8)}")
        a(f"s_or_b64 vcc, vcc, s[{sEX}:{sEX+1}]\ns_cbranch_vccz L_h4ok{sfx}")
        a(f"s_sleep {cfg.rsleep}")
        h4_loads()
        a(f"s_add_u32 s{sDG+1}, s{sDG+1}, 1\ns_cmp_lt_u32 s{sDG+1}, {SPIN}\ns_cbranch_scc1 L_h4{sfx}")
        fail(4)
        a("s_waitcnt vmcnt(0)")
        a.label("L_h4ok" + sfx)
        a("s_waitcnt lgkmcnt(0)")
    a(f"s_cmp_lt_u32 s{sW}, 4\ns_cbranch_scc1 L_f03")
    transpose(224, 192)
    a(f"s_lshr_b32 s{sT0}, s{sK0}, 1\ns_lshl_b32 s{sT1}, s{sT0}, 7")
    a(f"v_and_b32 v4, 12, v{vI}\nv_add_u32 v4, v4, v{vS}\nv_lshl_add_u32 v21, v4, 2, s{sT1}")
    a(f"s_lshl_b32 s{sT0}, s{sT0}, 10\ns_and_b32 s{sT1}, s{sW}, 1\ns_lshl_b32 s{sT1}, s{sT1}, 7\ns_add_u32 s{sT0}, s{sT0}, s{sT1}\ns_add_u32 s{sT0}, s{sT0}, {L_GP}")
    a(f"v_and_b32 v4, 3, v{vI}\nv_lshlrev_b32 v4, 5, v4\nv_lshl_add_u32 v4, v{vS}, 8, v4\nv_add_u32 v22, s{sT0}, v4")
    a(f"s_mov_b32 s{sK3}, 0x3f803f80")
    h4_reduce("a")
    stamp("h4red")
    a("s_barrier")
    stamp("b12")
    for k in (0, 2, 1, 3): a(f"ds_read_b128 {q(24+4*k)}, v7 offset:{L_AP+1024*k}")
    a("s_waitcnt lgkmcnt(2)")
    for k in range(2): a(f"v_pk_add_f32 {d(24+2*k)}, {d(24+2*k)}, {d(32+2*k)}")
    for k in range(2): a(f"v_cvt_pk_bf16_f32 v{32+k}, v{24+2*k}, v{25+2*k}")
    a("s_waitcnt lgkmcnt(0)")
    for k in range(2, 4): a(f"v_pk_add_f32 {d(24+2*k)}, {d(24+2*k)}, {d(32+2*k)}")
    a(f"v_dot2_f32_bf16 v40, v32, s{sK3}, 0\nv_dot2_f32_bf16 v41, v32, v32, 0")
    for k in range(2, 4): a(f"v_cvt_pk_bf16_f32 v{32+k}, v{24+2*k}, v{25+2*k}")
    for k in range(1, 4): a(f"v_dot2_f32_bf16 v40, v{32+k}, s{sK3}, v40\nv_dot2_f32_bf16 v41, v{32+k}, v{32+k}, v41")
    a(f"ds_write_b128 v7, {q(32)} offset:{L_HS}")
    for c in (Q1, Q2, HM, RM):
        dpp("v_add_f32", 40, 40, 40, c); dpp("v_add_f32", 41, 41, 41, c)
    swapred("v_add_f32", (40, 41), (42, 43), 16)
    swapred("v_add_f32", (40, 41), (42, 43), 32)
    ln_stats(40, 41)
    for k in range(4): pkfma(24+2*k, 40, 41)
    for k in range(4):
        a(f"v_cvt_pk_bf16_f32 v{36+k}, v{24+2*k}, v{25+2*k}")
    for gg in range(2):
        for k in range(4): a(f"ds_bpermute_b32 v{100+4*gg+k}, v21, v{36+k} offset:{64*gg}")
    stamp("ln2")
    for gg in range(2):
        a(f"s_waitcnt lgkmcnt({4-4*gg})")
        for i in range(8):
            mfma(64+4*i, 100+4*gg, (128 if gg == 0 else 192)+4*i, "0" if gg == 0 else 64+4*i)
    a("s_mov_b32 exec_lo, 0x00f0000f\ns_mov_b32 exec_hi, 0xf0000f00")
    for k in range(4): a(f"ds_write2_b32 v22, v{64+8*k}, v{68+8*k} offset0:{2*k} offset1:{2*k+1}")
    a("s_waitcnt lgkmcnt(0)")
    a("s_barrier")
    a("s_branch L_fin")
    a.label("L_f03")
    a(f"v_lshlrev_b32 v21, 2, v{vL}")
    a(f"s_lshl_b32 s{sT0}, s{sK0}, 6\ns_add_u32 s{sT0}, s{sT0}, {L_AS}")
    a(f"v_and_b32 v4, 31, v{vL}\nv_lshl_add_u32 v22, v4, 1, s{sT0}\nv_lshl_add_u32 v23, v{vS}, 4, s{sT0}")
    k1 = -2.0 * math.sqrt(2.0/math.pi) * math.log2(math.e)
    a(f"v_mov_b32 v40, {f2u(k1)}")
    h4_reduce("b")
    a("s_barrier")
    a(f"v_lshrrev_b32 v4, 3, v{vI}\nv_lshl_add_u32 v4, v{vS}, 1, v4\nv_lshlrev_b32 v4, 10, v4\nv_and_b32 v5, 7, v{vI}\nv_lshl_add_u32 v16, v5, 4, v4")
    a(f"s_lshl_b32 s{sK2}, s{sB45}, 16\ns_lshl_b32 s{sT1}, s{sFS}, 7\ns_add_u32 s{sK2}, s{sK2}, s{sT1}\ns_add_u32 s{sK2}, s{sK2}, {WS_H5}")
    a(f"s_and_b32 s{sT0}, s{sT1}, 0x3ff\ns_add_u32 s{sT0}, s{sT0}, {L_HS}\nv_lshl_add_u32 v19, v5, 4, s{sT0}")
    a(f"v_and_b32 v4, 1, v{vS}\nv_lshlrev_b32 v4, 3, v4\nv_lshl_add_u32 v18, v5, 4, v4")
    a(f"s_lshl_b32 s{sK1}, s{sB45}, 10\ns_add_u32 s{sK1}, s{sK1}, s{sT1}")
    a(f"s_mov_b32 s{sM}, 0xff\ns_mov_b32 s{sM+1}, 0\ns_mov_b32 s{sDG+1}, 0")
    a("s_barrier")
    stamp("b13")
    for p in range(8): a(f"ds_read_b32 v{24+p}, v21 offset:{L_GP+256*p}")
    a(f"ds_read_b128 {q(44)}, v19")
    a("s_waitcnt lgkmcnt(5)")
    a(f"v_pk_add_f32 {d(24)}, {d(24)}, {d(26)}")
    a("s_waitcnt lgkmcnt(1)")
    a(f"v_pk_add_f32 {d(28)}, {d(28)}, {d(30)}\nv_pk_add_f32 {d(24)}, {d(24)}, {d(28)}\nv_add_f32 v24, v24, v25")
    a("v_mov_b32 v25, v24\nv_permlane32_swap_b32 v24, v25")
    a(f"v_mul_f32 v26, v24, v24\nv_mul_f32 v25, v24, v25\nv_fmamk_f32 v26, v26, {f2u(k1*0.044715)}, v40\nv_mul_f32 v26, v26, v24")
    a("v_exp_f32 v26, v26\nv_add_f32 v26, 1.0, v26\nv_rcp_f32 v26, v26\nv_mul_f32 v26, v26, v25\nv_cvt_pk_bf16_f32 v26, v26, v26")
    a(f"ds_write_b16 v22, v26\nds_read_b128 {q(28)}, v23")
    a("s_waitcnt lgkmcnt(0)")
    for i in range(8): mfma(64+4*i, 28, 128+4*i, "0")
    for k in range(4): a(f"v_cndmask_b32 v{44+k}, 0, v{44+k}, s[{sM}:{sM+1}]")
    a("s_mov_b64 exec, 0xffff")
    for k in range(4): a(f"v_cvt_pk_bf16_f32 v{8+k}, v{64+8*k}, v{68+8*k}")
    a(f"buffer_store_dwordx4 {q(8)}, v7, {srd(S_WS)}, s{sK3} offen sc1")
    a("s_mov_b64 exec, -1")
    stamp("h5pub")
    a(f"s_cmp_ge_u32 s{sFS}, 8\ns_cbranch_scc1 L_fin")
    a(f"s_cmp_lg_u32 s{sW}, 0\ns_cbranch_scc1 L_fin")
    a("s_waitcnt vmcnt(0)")
    stamp("h5drain")
    a.label("L_h5")
    for t in range(7):
        a(f"s_add_u32 s{sT1}, s{sK2}, {t*8192}")
        a(f"buffer_load_dwordx4 {q(64+4*t)}, v16, {srd(S_WS)}, s{sT1} offen sc1")
    mfma(8, 12, 44, "0")
    for t in range(7):
        a(f"s_waitcnt vmcnt({6-t})")
        mfma(8, 12, 64+4*t, 8)
    for k in range(4): dpp("v_add_f32", 8+k, 8+k, 8+k, "row_ror:8")
    a(f"v_cmp_u_f32 vcc, v8, v9\nv_cmp_u_f32 s[{sEX}:{sEX+1}], v10, v11")
    a("v_cvt_pk_bf16_f32 v24, v8, v9\nv_cvt_pk_bf16_f32 v25, v10, v11")
    a(f"s_or_b64 vcc, vcc, s[{sEX}:{sEX+1}]\ns_cbranch_vccz L_h5ok")
    a(f"s_sleep {cfg.rsleep}")
    a(f"s_add_u32 s{sDG+1}, s{sDG+1}, 1\ns_cmp_lt_u32 s{sDG+1}, {SPIN}\ns_cbranch_scc1 L_h5")
    fail(5)
    a.label("L_h5ok")
    a("s_mov_b32 exec_lo, 0x00ff00ff\ns_mov_b32 exec_hi, 0")
    a(f"buffer_store_dwordx2 {d(24)}, v18, {srd(S_OUT)}, s{sK1} offen")
    a("s_cmp_lg_u32 s2, 0\ns_cbranch_scc1 L_fin")
    a("s_mov_b64 exec, 1")
    a(f"v_mov_b32 v4, s{sEP}\nv_mov_b32 v5, 0\nbuffer_store_dword v4, v5, {srd(S_WS)}, 0 offen sc1")

    a.label("L_fin")
    if cfg.echo:
        stamp("end")
        a(f"s_cmp_lg_u32 s2, 0\ns_cbranch_scc1 L_end\ns_cmp_lg_u32 s{sW}, {cfg.echo_w}\ns_cbranch_scc1 L_end")
        a("s_memrealtime s[90:91]\ns_waitcnt lgkmcnt(0)")
        a(f"s_sub_u32 s92, s{sST+2}, s{sST}\ns_lshl_b32 s92, s92, 1\ns_min_u32 s92, s92, 20000")
        a.label("L_echo")
        a("s_memrealtime s[94:95]\ns_waitcnt lgkmcnt(0)\ns_sub_u32 s94, s94, s90\ns_cmp_lt_u32 s94, s92\ns_cbranch_scc1 L_echo")
    elif cfg.stamps:
        stamp("end")
        a("s_mov_b64 exec, -1\ns_waitcnt lgkmcnt(0)")
        for k in range(8): a(f"v_writelane_b32 v4, s{sST+2*k}, {k}")
        a(f"v_writelane_b32 v4, s{sCNT}, 10\nv_writelane_b32 v4, s{sDG}, 11\nv_writelane_b32 v4, s{sDG+1}, 12")
        a(f"s_lshl_b32 s{sT0}, s2, 3\ns_add_u32 s{sT0}, s{sT0}, s{sW}\ns_lshl_b32 s{sT0}, s{sT0}, 6\ns_add_u32 s{sT0}, s{sT0}, {WS_STAMP}")
        a(f"v_lshlrev_b32 v5, 2, v{vL}\ns_mov_b64 exec, 0xffff")
        a(f"buffer_store_dword v4, v5, {srd(S_WS)}, s{sT0} offen")
    a.label("L_end")
    a("s_endpgm")
    a.label("L_codeend")
    lines, added = hz.pad(a.lines)
    hdr = open("sequential_preLN__compressed_kv_cla__geglu_ffn__decode.s.ref").read().split("; Override launch")[0]
    s = hdr + f"; @launch grid=(256,1,1) block=(512,1,1) lds={LDS_BYTES}\n" + TARGET + "\n".join(lines) + "\n" + kernel_desc(KNAME, 256)
    return s, added

if __name__ == "__main__":
    out = sys.argv[1] if len(sys.argv) > 1 else "k.s"
    class C(Cfg): pass
    for kv in sys.argv[2:]:
        k, v = kv.split("=", 1)
        setattr(C, k, eval(v))
    s, added = gen(C)
    open(out, "w").write(s)
    print("written", out, "nops added", added, "lines", s.count("\n"), "lds", LDS_BYTES)
```

```python
import sys, struct, math
from asmlib import *
import hz

def f2u(x): return struct.unpack("<I", struct.pack("<f", x))[0]

WS_EPOCH = 0
WS_FLAGS = 0x1000
WS_H1    = 0x10000
WS_H2    = 0x100000
WS_O     = 0x200000
WS_REC   = 0x600000
WS_H4    = 0x700000
WS_H5    = 0x740000
WS_STAMP = 0x800000
L_QA = 131072
MB = 147456
L_MX = MB
L_LS = MB+256
L_PT = L_LS+1280
L_QS = L_PT+4096
L_SIG = L_QS+1088
L_CS = L_SIG+16
L_CP = L_CS+1024
LDS_BYTES = L_CP+8*272
L_GP = 0; L_CG = 2048; L_HS = 8192; L_AS = 9216

S_X, S_WQ, S_WUK, S_CKV, S_WS, S_WUV, S_WO, S_WGU, S_WD, S_OUT, S_DBG = 4, 8, 12, 16, 20, 24, 28, 32, 36, 40, 44
P16, P8, PWS = 48, 64, 72
sW = 3
sH, sJ, sTAG, sPLO, sPHI, sCNT, sB45, sFS = 74, 75, 76, 77, 78, 79, 80, 81
sT0, sT1, sT2, sT3 = 82, 83, 84, 85
sST = 86
sM = 48
sK0, sK1, sK2, sK3 = 56, 57, 58, 59
sEX = 60
sC, sEP, sDG = 62, 63, 64

class Cfg:
    nt = ""
    nt2 = ""
    ntpf = ""
    stamps = False
    dbgstamps = False
    echo = False
    echo_w = 0
    codepf = True
    wn = 10
    wn1 = 5
    n1 = 8
    wn2 = 10
    ilv = False
    b2w = 6
    ld_at = "pub"
    pf_ld45 = -1
    pf_ldF = -1
    wo0 = 0
    pf_b3 = ()
    pf_b4 = (0,1,2,3)
    pf_tr = ()
    pf_ost = ()
    b9_early = False
    pf_comb = False
    wo1 = 0
    pf_wo = True
    pf_rec = False
    wuv1 = 0
    fullline = True
    rsleep = 2
    flag_first = False
    wuk_at = 'wq0'
    h1sleep = 0
    h4sleep = 12
    prio = True
    spin = 200000
    diag = 0

def gen(cfg=Cfg):
    SPIN = cfg.spin
    a = Asm()
    nt, nt2 = cfg.nt, cfg.nt2
    vL, vI, vS = 1, 2, 3
    def stamp(name):
        if cfg.stamps and name in cfg.stamps:
            k = cfg.stamps.index(name)
            a(f"s_memrealtime s[{sST+2*k}:{sST+2*k+1}]")
    def q(r): return f"v[{r}:{r+3}]"
    def d(r): return f"v[{r}:{r+1}]"
    def srd(s): return f"s[{s}:{s+3}]"
    def base(s, p): a(f"s_mov_b32 s{s}, s{p}\ns_mov_b32 s{s+1}, s{p+1}")
    def transpose(src, dst):
        for dw in range(4):
            for k2 in range(4):
                r0 = src + 4*(2*k2) + dw; r1 = src + 4*(2*k2+1) + dw
                a(f"v_perm_b32 v{dst+4*(2*dw)+k2}, v{r1}, v{r0}, s{sPLO}")
                a(f"v_perm_b32 v{dst+4*(2*dw+1)+k2}, v{r1}, v{r0}, s{sPHI}")
    def mfma(dst, A, B, C):
        c = q(C) if isinstance(C, int) else C
        a(f"v_mfma_f32_16x16x32_bf16 {q(dst)}, {q(A)}, {q(B)}, {c}")
    def capture(fn):
        n = len(a.lines); fn(); out = a.lines[n:]; del a.lines[n:]; return out
    def weave(mf, fill, per=2):
        fill = list(fill)
        for m in mf:
            a.lines.append(m)
            k = 0
            while fill and k < per:
                l = fill.pop(0); a.lines.append(l)
                if not l.strip().startswith("s_waitcnt"): k += 1
        a.lines.extend(fill)
    def swapred(op, regs, tmps, which):
        for r, t in zip(regs, tmps): a(f"v_mov_b32 v{t}, v{r}")
        for r, t in zip(regs, tmps): a(f"v_permlane{which}_swap_b32 v{r}, v{t}")
        for r, t in zip(regs, tmps): a(f"{op} v{r}, v{r}, v{t}")
    def dpp(op, dst, src, other, ctl, bank="0xf"):
        a(f"{op}_dpp v{dst}, v{src}, v{other} {ctl} row_mask:0xf bank_mask:{bank}")
    Q1, Q2, HM, RM = "quad_perm:[1,0,3,2]", "quad_perm:[2,3,0,1]", "row_half_mirror", "row_mirror"
    def ln_stats(vs, vq):
        a(f"v_mul_f32 v{vs}, {f2u(-1.0/512)}, v{vs}")
        a(f"v_mul_f32 v{vq}, {f2u(1.0/512)}, v{vq}")
        a(f"v_fma_f32 v{vq}, -v{vs}, v{vs}, v{vq}")
        a(f"v_max_f32 v{vq}, 0, v{vq}")
        a(f"v_add_f32 v{vq}, {f2u(1e-5)}, v{vq}")
        a(f"v_rsq_f32 v{vq}, v{vq}")
        a(f"v_mul_f32 v{vs}, v{vs}, v{vq}")
    def pkfma(r, vs, vq):
        a(f"v_pk_fma_f32 {d(r)}, {d(r)}, {d(vs)}, {d(vs)} op_sel:[0,1,0] op_sel_hi:[1,1,0]")
    def fail(code):
        a(f"v_mov_b32 v4, {code}\nv_mov_b32 v5, 0\nbuffer_store_dword v4, v5, {srd(S_DBG)}, 0 offen offset:{4*code}")
    def spin_check(lbl_retry, code):
        a(f"s_add_u32 s{sCNT}, s{sCNT}, 1\ns_cmp_lt_u32 s{sCNT}, {SPIN}\ns_cbranch_scc1 {lbl_retry}")
        fail(code)
    def make_tag():
        a("s_waitcnt lgkmcnt(0)")
        a(f"s_mul_i32 s{sEP}, s{sTAG}, 0x9E3779B1\ns_add_u32 s{sEP}, s{sEP}, 0x7F4A7C15\ns_and_b32 s{sTAG}, s{sEP}, 0xBFFFBFFF")
    def rest_srds():
        base(S_CKV, P16+2); base(S_WS, PWS); base(S_WUV, P16+8); base(S_WO, P16+10); base(S_WD, P8+2); base(S_OUT, P8+4); base(S_DBG, P8+6)
        a(f"s_bitcmp1_b32 s{sW}, 0\ns_cselect_b32 s{S_WGU}, s{P8}, s{P16+14}\ns_cselect_b32 s{S_WGU+1}, s{P8+1}, s{P16+15}")
        a(f"s_load_dword s{sTAG}, s[{PWS}:{PWS+1}], {WS_EPOCH}")
    def consts():
        for g in range(4):
            m = 0x000F000F << (4*g)
            a(f"s_mov_b32 s{sM+2*g}, {m:#x}\ns_mov_b32 s{sM+2*g+1}, {m:#x}")

    kernel_begin(a, KNAME)
    a.label("L_code0")
    stamp("start")
    a("s_cmp_ge_u32 s2, 256\ns_cbranch_scc1 L_end")
    a(f"s_load_dwordx16 s[{P16}:{P16+15}], s[0:1], 0\ns_load_dwordx8 s[{P8}:{P8+7}], s[0:1], 64\ns_load_dwordx2 s[{PWS}:{PWS+1}], s[0:1], 96")
    a(f"v_lshrrev_b32 v4, 6, v0\nv_and_b32 v{vL}, 63, v0")
    a(f"v_readfirstlane_b32 s{sW}, v4")
    a(f"v_and_b32 v{vI}, 15, v0\nv_bfe_u32 v{vS}, v0, 4, 2")
    a(f"s_and_b32 s{sH}, s2, 7\ns_lshr_b32 s{sT0}, s2, 6\ns_lshl_b32 s{sT0}, s{sT0}, 3\ns_or_b32 s{sH}, s{sH}, s{sT0}")
    a(f"s_bfe_u32 s{sJ}, s2, 0x30003")
    for s, n in ((S_X,'x'),(S_WQ,'wq'),(S_WUK,'wuk'),(S_CKV,'ckv'),(S_WS,'ws'),(S_WUV,'wuv'),(S_WO,'wo'),(S_WGU,'wg'),(S_WD,'wd'),(S_OUT,'out'),(S_DBG,'dbg')):
        a(f"s_mov_b32 s{s+2}, {SIZE[n]}\ns_mov_b32 s{s+3}, 0x20000")
    a(f"s_mov_b32 s{sPLO}, 0x05040100\ns_mov_b32 s{sPHI}, 0x07060302\ns_mov_b32 s{sCNT}, 0")
    a(f"s_and_b32 s{sB45}, s{sJ}, 3")
    a(f"s_lshr_b32 s{sT0}, s{sJ}, 2\ns_lshl_b32 s{sFS}, s{sH}, 1\ns_add_u32 s{sFS}, s{sFS}, s{sT0}")
    if cfg.stamps:
        for k in range(1, 8): a(f"s_mov_b32 s{sST+2*k}, 0")
    a(f"s_cmp_lg_u32 s{sW}, 4\ns_cbranch_scc1 L_not0")

    if cfg.prio: a("s_setprio 3")
    a(f"v_and_b32 v4, 3, v{vL}\nv_lshlrev_b32 v4, 10, v4")
    a(f"v_lshrrev_b32 v5, 2, v{vL}\nv_lshl_add_u32 v5, v5, 6, v4")
    a(f"v_lshl_add_u32 v4, v{vS}, 4, v4")
    a(f"v_lshlrev_b32 v6, 16, v{vS}\nv_lshl_add_u32 v6, v{vI}, 4, v6")
    a(f"v_lshlrev_b32 v7, 13, v{vI}\nv_lshl_add_u32 v7, v{vS}, 4, v7")
    a(f"s_lshl_b32 s{sT2}, s{sJ}, 7")
    a(f"s_lshl_b32 s{sT0}, s{sJ}, 19\ns_lshl_b32 s{sT1}, s{sH}, 8\ns_add_u32 s{sT0}, s{sT0}, s{sT1}")
    a("s_waitcnt lgkmcnt(0)")
    stamp("karg")
    base(S_X, P16); base(S_WQ, P16+4)
    for k in range(4): a(f"buffer_load_dwordx4 {q(8+4*k)}, v5, {srd(S_X)}, 0 offen offset:{16*k}")
    for k in range(2): a(f"buffer_load_dwordx4 {q(24+4*k)}, v4, {srd(S_X)}, s{sT2} offen offset:{64*k}")
    for ks in range(2):
        for r in range(8):
            a(f"s_add_u32 s{sT1}, s{sT0}, {(32*ks+r)*8192}")
            a(f"buffer_load_dwordx4 {q(64+32*ks+4*r)}, v6, {srd(S_WQ)}, s{sT1} offen{nt}")
    base(S_WUK, P16+6)
    def wuk_loads(vo, so):
        for n_ in range(4):
            for ks in range(4):
                a(f"buffer_load_dwordx4 {q(192+16*n_+4*ks)}, v{vo}, {srd(S_WUK)}, s{so} offen offset:{64*ks}{nt}")
            if n_ < 3: a(f"s_add_u32 s{so}, s{so}, {16*8192}")
    nuk = 16 if cfg.wuk_at == "iss" else 0
    if nuk: wuk_loads(7, sT0)
    else: a(f"v_mov_b32 v187, v7\ns_mov_b32 s{sT3}, s{sT0}")
    stamp("w0_iss")
    if cfg.ld_at == "iss": a("s_barrier")
    rest_srds(); consts()
    def qa_pub_addr(dst):
        a(f"v_lshrrev_b32 v4, 2, v{vI}\nv_lshlrev_b32 v4, 1, v4\nv_lshrrev_b32 v5, 1, v{vS}\nv_add_u32 v4, v4, v5")
        a(f"s_lshl_b32 s{sT0}, s{sJ}, 3\ns_and_b32 s{sT1}, s{sH}, 15\ns_xor_b32 s{sT0}, s{sT0}, s{sT1}")
        a(f"v_xor_b32 v4, s{sT0}, v4\nv_lshlrev_b32 v4, 4, v4")
        a(f"v_and_b32 v5, 1, v{vS}\nv_lshl_add_u32 v4, v5, 3, v4")
        a(f"v_and_b32 v5, 3, v{vI}\nv_lshl_add_u32 v{dst}, v5, 15, v4")
        a(f"s_lshl_b32 s{sK3}, s{sH}, 10\ns_add_u32 s{sK3}, s{sK3}, {WS_H2}")
    a(f"s_mov_b32 s{sK0}, 0x3f803f80")
    a("v_mov_b32 v32, 0\nv_mov_b32 v33, 0")
    a(f"s_waitcnt vmcnt({18+nuk})")
    stamp("w0_x")
    for k in range(16):
        a(f"v_dot2_f32_bf16 v32, v{8+k}, s{sK0}, v32\nv_dot2_f32_bf16 v33, v{8+k}, v{8+k}, v33")
    for c in ("row_ror:4", "row_ror:8"):
        dpp("v_add_f32", 32, 32, 32, c); dpp("v_add_f32", 33, 33, 33, c)
    swapred("v_add_f32", (32, 33), (34, 35), 16)
    swapred("v_add_f32", (32, 33), (34, 35), 32)
    ln_stats(32, 33)
    a(f"s_waitcnt vmcnt({16+nuk})")
    for k in range(8): a(f"v_lshlrev_b32 v{8+2*k}, 16, v{24+k}\nv_and_b32 v{9+2*k}, 0xffff0000, v{24+k}")
    for k in range(8): pkfma(8+2*k, 32, 33)
    for k in range(8): a(f"v_cvt_pk_bf16_f32 v{24+k}, v{8+2*k}, v{9+2*k}")
    for g in range(4):
        for k in range(8):
            a(f"v_cndmask_b32 v{32+8*g+k}, 0, v{24+k}, s[{sM+2*g}:{sM+2*g+1}]")
    stamp("w0_ln")
    a(f"v_lshlrev_b32 v7, 4, v{vL}")
    a(f"s_lshl_b32 s{sK1}, s{sH}, 14\ns_add_u32 s{sK1}, s{sK1}, {WS_H1}\ns_add_u32 s{sK2}, s{sK1}, 8192")
    a(f"s_lshl_b32 s{sT0}, s{sJ}, 11\ns_add_u32 s{sT0}, s{sT0}, s{sK1}")
    make_tag()
    a(f"v_mov_b32 v18, s{sTAG}\nv_mov_b32 v19, s{sTAG}\nv_mov_b32 v22, s{sTAG}\nv_mov_b32 v23, s{sTAG}")
    for ks in range(2):
        a(f"s_waitcnt vmcnt({8+nuk-8*ks+(16 if (ks == 1 and cfg.wuk_at == 'wq0') else 0)})")
        if ks == 1: stamp("w0_wq")
        if (ks == 0 and cfg.wuk_at == "wq0") or (ks == 1 and cfg.wuk_at == "wq1"): wuk_loads(187, sT3)
        dst = 128 if ks == 0 else 64
        transpose(64+32*ks, dst)
        for g in range(4):
            for t in range(2):
                mfma(8+4*t, 32+8*g+4*ks, dst+4*(4*t+g), "0" if (ks == 0 and g == 0) else 8+4*t)
    for t in range(2):
        r = 8+4*t; o = 16+4*t
        a(f"v_cvt_pk_bf16_f32 v{o}, v{r}, v{r+1}\nv_cvt_pk_bf16_f32 v{o+1}, v{r+2}, v{r+3}")
        a(f"buffer_store_dwordx4 {q(o)}, v7, {srd(S_WS)}, s{sT0} offen offset:{1024*t} sc1")
    stamp("w0_pub")
    if cfg.wuk_at == "pub": wuk_loads(187, sT3)
    if cfg.ld_at == "pub": a("s_barrier")
    a(f"v_and_b32 v4, 1, v{vI}\nv_lshlrev_b32 v4, 4, v4\nv_mov_b32 v5, 0x3f80\nv_lshlrev_b32 v4, v4, v5\nv_and_b32 v5, 2, v{vI}")
    a("v_cmp_eq_u32 vcc, 0, v5\nv_cndmask_b32 v5, 0, v4, vcc\nv_cndmask_b32 v4, v4, 0, vcc")
    for g in range(4):
        a(f"v_cndmask_b32 v{168+4*g}, 0, v5, s[{sM+2*g}:{sM+2*g+1}]\nv_cndmask_b32 v{169+4*g}, 0, v4, s[{sM+2*g}:{sM+2*g+1}]")
        a(f"v_mov_b32 v{170+4*g}, 0\nv_mov_b32 v{171+4*g}, 0")
    qa_pub_addr(164)
    a(f"v_mov_b32 v186, {L_SIG}")
    a(f"v_lshlrev_b32 v166, 11, v{vS}\nv_lshl_add_u32 v166, v{vI}, 4, v166")
    a(f"v_lshlrev_b32 v167, 4, v{vI}\nv_lshl_add_u32 v167, v{vS}, 1, v167\nv_add_u32 v167, {L_QS}, v167")
    a(f"v_and_b32 v184, 3, v{vI}\nv_mul_u32_u24 v184, 272, v184\nv_lshl_add_u32 v184, v{vS}, 4, v184\nv_add_u32 v184, {L_QS}, v184")
    a(f"s_waitcnt vmcnt({16 if cfg.wuk_at == 'pub' else 0})")
    stamp("w0_drain")
    if cfg.h1sleep: a(f"s_sleep {cfg.h1sleep}")
    def h1_loads():
        for u in range(2):
            for pg in range(8):
                a(f"buffer_load_dwordx4 {q(64+32*u+4*pg)}, v166, {srd(S_WS)}, s{sK1+u} offen offset:{256*pg} sc1")
    if cfg.diag & 1:
        if cfg.ld_at == "h1": a("s_barrier")
        a("s_branch L_flok")
    h1_loads()
    if cfg.ld_at == "h1": a("s_barrier")
    a.label("L_h1")
    for u in range(2):
        for pg in range(8):
            n = 8*u+pg; r = 64+4*n
            a(f"s_waitcnt vmcnt({15-n})")
            mfma(8+4*(pg>>2), 168+4*(pg&3), r, "0" if (u == 0 and (pg&3) == 0) else 8+4*(pg>>2))
            if n == 0: a(f"v_xor_b32 v4, s{sTAG}, v{r+2}")
            else: a(f"v_bitop3_b32 v4, v{r+2}, s{sTAG}, v4 bitop3:0xbe")
    stamp("w0_h1")
    a("v_cmp_ne_u32 vcc, 0, v4\ns_cbranch_vccz L_h1ok")
    a(f"s_sleep {cfg.rsleep}")
    h1_loads()
    spin_check("L_h1", 1)
    a("s_waitcnt vmcnt(0)")
    a.label("L_h1ok")
    for t in range(2):
        for bp in range(2):
            a(f"v_cvt_pk_bf16_f32 v{16+2*t+bp}, v{8+4*t+2*bp}, v{8+4*t+2*bp+1}")
            a(f"ds_write_b16 v167, v{16+2*t+bp} offset:{272*(2*bp)+8*t}")
            a(f"ds_write_b16_d16_hi v167, v{16+2*t+bp} offset:{272*(2*bp+1)+8*t}")
    for ks in range(4): a(f"ds_read_b128 {q(32+4*ks)}, v184 offset:{64*ks}")
    a("ds_read_b32 v10, v186")
    a(f"s_mov_b32 s{sT1}, {WS_FLAGS}")
    for ks in range(4):
        a(f"s_waitcnt lgkmcnt({4-ks})")
        for n_ in range(4):
            mfma(48+4*n_, 192+16*n_+4*ks, 32+4*ks, "0" if ks == 0 else 48+4*n_)
    for n_ in range(4):
        a(f"s_mov_b64 exec, s[{sM+2*n_}:{sM+2*n_+1}]")
        a(f"v_cvt_pk_bf16_f32 v8, v{48+4*n_}, v{49+4*n_}\nv_cvt_pk_bf16_f32 v9, v{50+4*n_}, v{51+4*n_}")
    a("s_mov_b64 exec, -1")
    a.label("L_sig")
    a(f"s_waitcnt lgkmcnt(0)\nv_cmp_ne_u32 vcc, s{sTAG}, v10\ns_cbranch_vccz L_sigok")
    a("ds_read_b32 v10, v186\ns_branch L_sig")
    a.label("L_sigok")
    a(f"buffer_store_dwordx2 {d(8)}, v164, {srd(S_WS)}, s{sK3} offen sc1")
    stamp("w0_qapub")
    a.label("L_fl")
    a(f"buffer_load_dwordx4 {q(12)}, v7, {srd(S_WS)}, s{sT1} offen sc1")
    a("s_waitcnt vmcnt(0)")
    a(f"v_xor_b32 v4, s{sTAG}, v12")
    for k in range(1, 4): a(f"v_bitop3_b32 v4, v{12+k}, s{sTAG}, v4 bitop3:0xbe")
    a("v_cmp_ne_u32 vcc, 0, v4\ns_cbranch_vccz L_flok")
    a(f"s_sleep {cfg.rsleep}")
    spin_check("L_fl", 6)
    a.label("L_flok")
    stamp("w0_fl")
    def pv_prep():
        a(f"s_and_b32 s{sK0}, s{sW}, 3")
        a(f"v_lshrrev_b32 v4, 2, v{vI}\nv_lshlrev_b32 v4, 1, v4\nv_lshl_add_u32 v4, v{vS}, 3, v4")
        a(f"v_bfe_u32 v5, v{vI}, 1, 1\nv_lshl_add_u32 v5, s{sK0}, 4, v5")
        a(f"v_and_b32 v6, 15, v4\nv_xor_b32 v5, v5, v6\nv_lshlrev_b32 v5, 4, v5\nv_lshl_add_u32 v4, v4, 10, v5")
        a(f"v_and_b32 v5, 1, v{vI}\nv_lshl_add_u32 v4, v5, 3, v4")
        for t in range(8):
            for aa in range(2):
                a(f"v_xor_b32 v{16+2*t+aa}, {(((2*t)|aa)<<4) | (aa<<10)}, v4")
        a(f"v_lshlrev_b32 v8, 4, v{vI}\nv_add_u32 v8, {L_MX}, v8\nv_lshl_add_u32 v9, v{vS}, 2, v8")
        a(f"v_mul_u32_u24 v10, 80, v{vI}\nv_lshl_add_u32 v10, v{vS}, 4, v10\nv_add_u32 v10, {L_LS}, v10")
        if cfg.fullline:
            a(f"v_and_b32 v4, 7, v{vI}\nv_lshlrev_b32 v4, 17, v4\nv_lshl_add_u32 v4, v{vS}, 4, v4\nv_lshrrev_b32 v5, 3, v{vI}\nv_lshl_add_u32 v4, v5, 6, v4\nv_lshl_add_u32 v11, s{sK0}, 8, v4")
        else:
            a(f"v_lshlrev_b32 v4, 17, v{vI}\nv_lshl_add_u32 v4, v{vS}, 4, v4\nv_lshl_add_u32 v11, s{sK0}, 8, v4")
        a(f"s_lshr_b32 s{sT0}, s2, 7\ns_lshl_b32 s{sT2}, s{sT0}, 21\ns_and_b32 s{sT1}, s2, 127\ns_lshl_b32 s{sT3}, s{sT1}, 10\ns_add_u32 s{sT2}, s{sT2}, s{sT3}\ns_add_u32 s{sM}, s{sT2}, {WS_O}\ns_add_u32 s{sM+1}, s{sM}, {8<<17}")
        a(f"s_lshl_b32 s{sT1}, s{sT1}, 1\ns_add_u32 s{sT0}, s{sT0}, s{sT1}\ns_lshl_b32 s{sT0}, s{sT0}, 2\ns_add_u32 s{sT0}, s{sT0}, s{sK0}\ns_lshl_b32 s{sT0}, s{sT0}, 8\ns_add_u32 s{sM+2}, s{sT0}, {WS_REC}")
        a(f"s_mov_b32 s{sM+3}, 0x800080")
    if cfg.stamps: a(f"s_mov_b32 s{sDG}, s{sCNT}")
    a("s_branch L_pvp")

    a.label("L_not0")
    a(f"v_lshlrev_b32 v7, 4, v{vL}")
    a("s_waitcnt lgkmcnt(0)")
    base(S_X, P16)
    rest_srds()
    if cfg.stamps: a(f"s_mov_b32 s{sDG}, 0")
    a(f"s_cmp_lt_u32 s{sW}, 4\ns_cbranch_scc1 L_s03")
    a(f"s_cmp_lg_u32 s{sW}, 5\ns_cbranch_scc1 L_not1")
    if cfg.prio: a("s_setprio 3")
    a("v_mov_b32 v8, -1\nv_mov_b32 v9, -1\nv_mov_b32 v10, -1\nv_mov_b32 v11, -1")
    qa_pub_addr(12)
    a(f"buffer_store_dwordx2 {d(8)}, v12, {srd(S_WS)}, s{sK3} offen sc1")
    a(f"s_lshl_b32 s{sT0}, s{sB45}, 6\ns_add_u32 s{sT0}, s{sT0}, s{sFS}\ns_lshl_b32 s{sT0}, s{sT0}, 10\ns_add_u32 s{sT1}, s{sT0}, {WS_H4}")
    a(f"buffer_store_dwordx4 {q(8)}, v7, {srd(S_WS)}, s{sT1} offen sc1")
    a(f"s_add_u32 s{sT1}, s{sT0}, {WS_H5}")
    a(f"buffer_store_dwordx4 {q(8)}, v7, {srd(S_WS)}, s{sT1} offen sc1")
    if not cfg.flag_first: a("s_barrier")
    make_tag()
    a(f"v_mov_b32 v14, s{sTAG}\nv_mov_b32 v15, 0\nv_mov_b32 v16, {L_SIG}")
    a(f"s_lshl_b32 s{sT0}, s2, 2\ns_add_u32 s{sT0}, s{sT0}, {WS_FLAGS}")
    a("s_waitcnt vmcnt(0)")
    stamp("w1_rst")
    a("ds_write_b32 v16, v14")
    a("s_mov_b64 exec, 1")
    a(f"buffer_store_dword v14, v15, {srd(S_WS)}, s{sT0} offen sc1")
    a("s_mov_b64 exec, -1\ns_waitcnt lgkmcnt(0)")
    if cfg.flag_first: a("s_barrier")
    a("s_branch L_not1b")
    a.label("L_not1")
    if cfg.codepf:
        a(f"s_cmp_lg_u32 s{sW}, 6\ns_cbranch_scc1 L_nopf2")
        a(f"s_getpc_b64 s[{sEX}:{sEX+1}]")
        a.label("L_pc")
        a(f"s_sub_u32 s{sEX}, s{sEX}, L_pc-L_code0\ns_subb_u32 s{sEX+1}, s{sEX+1}, 0")
        a(f"s_lshr_b32 s{sT0}, s2, 3\ns_lshl_b32 s{sT0}, s{sT0}, 10")
        a(f"v_lshl_add_u32 v4, v{vL}, 7, s{sT0}")
        a(f"v_cmp_gt_u32 vcc, L_codeend-L_code0, v4")
        a(f"s_and_b64 exec, vcc, 0xff\ns_cbranch_execz L_nopf")
        a(f"global_load_dword v0, v4, s[{sEX}:{sEX+1}]")
        a.label("L_nopf")
        a("s_mov_b64 exec, -1")
        a.label("L_nopf2")
    a("s_barrier")
    make_tag()
    a.label("L_not1b")

    a.label("L_pvp")
    if cfg.prio: a("s_setprio 2")
    pv_prep()
    a(f"s_bfe_u32 s{sT0}, s2, 0x20005\ns_lshl_b32 s{sT0}, s{sT0}, 15\ns_lshr_b32 s{sT2}, s2, 7\ns_lshl_b32 s{sT2}, s{sT2}, 14\ns_add_u32 s{sT0}, s{sT0}, s{sT2}")
    a(f"s_lshl_b32 s{sT2}, s{sK0}, 12\ns_add_u32 s{sT0}, s{sT0}, s{sT2}\ns_add_u32 s{sK2}, s{sT0}, {WS_H2}\ns_add_u32 s{sT2}, s{sT2}, {L_QA}")
    a(f"v_add_u32 v6, s{sT2}, v7\ns_mov_b32 s{sDG+1}, 0")
    def pf_one(n):
        if n < 2:
            a(f"s_lshl_b32 s{sT0}, s{sB45}, 20\ns_lshl_b32 s{sT1}, s{sFS}, 7\ns_add_u32 s{sT0}, s{sT0}, s{sT1}\ns_add_u32 s{sT0}, s{sT0}, {n<<19}\nv_lshlrev_b32 v5, 13, v{vL}")
            a(f"buffer_load_dword v0, v5, {srd(S_WUV)}, s{sT0} offen{cfg.ntpf}")
        elif n < 4:
            a(f"s_lshl_b32 s{sT0}, s{sFS}, 16\ns_lshl_b32 s{sT1}, s{sB45}, 14\ns_add_u32 s{sT0}, s{sT0}, s{sT1}\ns_add_u32 s{sT0}, s{sT0}, {(n-2)<<13}\nv_lshlrev_b32 v5, 7, v{vL}")
            a(f"buffer_load_dword v0, v5, {srd(S_WO)}, s{sT0} offen{cfg.ntpf}")
        elif n < 6:
            a(f"v_mul_u32_u24 v5, 3584, v{vL}\ns_mul_i32 s{sT0}, s{sJ}, {64*3584}\ns_lshl_b32 s{sT1}, s{sH}, 7\ns_add_u32 s{sT0}, s{sT0}, s{sT1}")
            a(f"buffer_load_dword v0, v5, {srd(S_WGU)}, s{sT0} offen{cfg.ntpf}")
        else:
            a(f"s_lshl_b32 s{sT1}, s{sH}, 16\ns_lshl_b32 s{sT0}, s{sJ}, 13\ns_add_u32 s{sT0}, s{sT0}, s{sT1}\nv_lshlrev_b32 v5, 7, v{vL}")
            a(f"buffer_load_dword v0, v5, {srd(S_WD)}, s{sT0} offen{cfg.ntpf}")
    def pf_range(lst):
        if not lst: return
        l = a.newlabel("L_pf")
        for cq in range(4):
            mine = [n for n in lst if (n & 3) == cq]
            if not mine: continue
            a(f"s_cmp_lg_u32 s{sK0}, {cq}\ns_cbranch_scc1 {l}_{cq}")
            for n in mine: pf_one(n)
            a.label(f"{l}_{cq}")
    def qa_loads():
        for r in range(4):
            a(f"buffer_load_dwordx4 {q(192+4*r)}, v7, {srd(S_WS)}, s{sK2} offen offset:{1024*r} sc1")
    a("s_barrier")
    stamp("b2")
    qa_loads()
    if cfg.pf_b3:
        a("s_barrier")
    def qa_check(extra):
        for r in range(4):
            rr = 192+4*r
            a(f"s_waitcnt vmcnt({3-r+extra})")
            a(f"ds_write_b128 v6, {q(rr)} offset:{1024*r}")
            if r == 0: a(f"v_max3_u32 v4, v{rr}, v{rr+1}, v{rr+2}\nv_max_u32 v4, v4, v{rr+3}")
            else: a(f"v_max3_u32 v4, v4, v{rr}, v{rr+1}\nv_max3_u32 v4, v4, v{rr+2}, v{rr+3}")
        a("v_cmp_eq_u32 vcc, -1, v4")
    if cfg.pf_b3:
        for cq in range(4):
            mine = [n for n in cfg.pf_b3 if (n & 3) == cq]
            a(f"s_cmp_lg_u32 s{sK0}, {cq}\ns_cbranch_scc1 L_qa{cq}")
            for n in mine: pf_one(n)
            qa_check(len(mine))
            a("s_branch L_qaj")
            a.label(f"L_qa{cq}")
    a.label("L_qachk")
    qa_check(0)
    a.label("L_qaj")
    a("s_cbranch_vccz L_qaok")
    a(f"s_add_u32 s{sDG+1}, s{sDG+1}, 1\ns_cmp_ge_u32 s{sDG+1}, {SPIN}\ns_cbranch_scc1 L_qafail")
    a(f"s_sleep {cfg.rsleep}\ns_waitcnt lgkmcnt(0)")
    qa_loads()
    a("s_branch L_qachk")
    a.label("L_qafail")
    fail(2)
    a.label("L_qaok")
    if cfg.stamps: a(f"s_lshl_b32 s{sT0}, s{sDG+1}, 16\ns_add_u32 s{sDG}, s{sDG}, s{sT0}")
    a("s_waitcnt lgkmcnt(0)")
    def wuv_loads(lo, hi):
        if lo >= hi: return
        a(f"v_lshrrev_b32 v4, 3, v{vI}\nv_lshlrev_b32 v4, 3, v4\nv_add_u32 v4, v4, v{vS}\nv_lshlrev_b32 v4, 15, v4\nv_and_b32 v5, 7, v{vI}\nv_lshl_add_u32 v6, v5, 4, v4")
        a(f"s_lshl_b32 s{sT0}, s{sK0}, 20\ns_lshl_b32 s{sT1}, s{sFS}, 7\ns_add_u32 s{sT0}, s{sT0}, s{sT1}")
        for n in range(lo, hi):
            gg, r = n >> 3, n & 7
            a(f"s_add_u32 s{sT1}, s{sT0}, {(64*gg+16*(r>>2)+(r&3))*8192}")
            a(f"buffer_load_dwordx4 {q(192+4*n)}, v6, {srd(S_WUV)}, s{sT1} offen{nt2}")
    a("s_barrier")
    stamp("b4")
    pf_range(cfg.pf_b4)
    if cfg.prio: a("s_setprio 0")
    for tg in range(2):
        for half in range(2):
            for kk in range(2*half, 2*half+2):
                for t in range(4*tg, 4*tg+4):
                    for aa in range(2):
                        a(f"ds_read_b64_tr_b16 {d(64+32*kk+4*t+2*aa)}, v{16+2*t+aa} offset:{(kk&1)*32768}")
            if half == 0:
                for k in range(8*tg, 8*tg+8): a(f"v_add_u32 v{16+k}, 0x10000, v{16+k}")
    pf_range(cfg.pf_tr)
    wuv_loads(0, cfg.wuv1)
    a(f"v_add_u32 v6, {L_PT}, v7\nv_mov_b32 v15, s{sTAG}")
    stamp("tr")
    if cfg.prio: a("s_setprio 1")
    a("s_barrier")
    stamp("b6")
    a(f"ds_read_b128 {q(48)}, v8")
    for kk in range(4): a(f"ds_read_b128 {q(16+4*kk)}, v6 offset:{kk*1024}")
    a(f"ds_read_b128 {q(52)}, v10\nds_read_b32 v56, v9")
    a("s_waitcnt lgkmcnt(6)")
    a("v_max3_i32 v12, v48, v49, v50\nv_max_i32 v12, v12, v51")
    def pscale(kk):
        a(f"v_sub_u32 v4, v12, v{48+kk}\nv_min_u32 v4, 255, v4\nv_mul_u32_u24 v4, s{sM+3}, v4")
        a(f"s_waitcnt lgkmcnt({5-kk})")
        for k in range(4): a(f"v_pk_sub_u16 v{16+4*kk+k}, v{16+4*kk+k}, v4 clamp")
    def ocvt(tp):
        for u in range(2):
            r = 32+4*(2*tp+u)
            a(f"v_cvt_pk_bf16_f32 v{64+4*tp+2*u}, v{r}, v{r+1}\nv_cvt_pk_bf16_f32 v{65+4*tp+2*u}, v{r+2}, v{r+3}")
    def ostore(hf):
        A, B, o = 64+8*hf, 68+8*hf, 80
        for k in range(4): a(f"v_mov_b32 v{o+k}, v{A+k}")
        for k in range(4): a(f"v_mov_b32_dpp v{A+k}, v{B+k} row_ror:8 row_mask:0xf bank_mask:0xc")
        a(f"buffer_store_dwordx4 {q(A)}, v11, {srd(S_WS)}, s{sM} offen offset:{128*hf} sc1")
        for k in range(4): a(f"v_mov_b32_dpp v{B+k}, v{o+k} row_ror:8 row_mask:0xf bank_mask:0x3")
        a(f"buffer_store_dwordx4 {q(B)}, v11, {srd(S_WS)}, s{sM+1} offen offset:{128*hf} sc1")
    def pvm(tg, kk): return capture(lambda: [mfma(32+4*t, 64+32*kk+4*t, 16+4*kk, "0" if kk == 0 else 32+4*t) for t in range(4*tg, 4*tg+4)])
    def lcalc():
        a("s_waitcnt lgkmcnt(0)")
        a(f"v_pk_add_f32 {d(52)}, {d(52)}, {d(54)}\nv_sub_u32 v5, v56, v12\nv_cvt_f32_i32 v12, v12\nv_add_f32 v13, v52, v53\nv_ldexp_f32 v13, v13, v5")
    pscale(0)
    stamp("pv0")
    for kk in range(4):
        weave(pvm(0, kk), capture((lambda: pscale(kk+1)) if kk < 3 else lcalc))
    stamp("pv1")
    fill = capture(lambda: (swapred("v_add_f32", (13,), (5,), 16), swapred("v_add_f32", (13,), (14,), 32), ocvt(0), ocvt(1), ostore(0)))
    weave(pvm(1, 0) + pvm(1, 1) + pvm(1, 2) + pvm(1, 3), fill)
    stamp("pv2")
    ocvt(2); ocvt(3); ostore(1)
    stamp("ost")
    a("s_barrier")
    a("v_bitop3_b32 v4, v64, v65, v66 bitop3:0x96\nv_bitop3_b32 v5, v68, v69, v70 bitop3:0x96")
    a("v_bitop3_b32 v4, v4, v67, v72 bitop3:0x96\nv_bitop3_b32 v5, v5, v71, v76 bitop3:0x96")
    a("v_bitop3_b32 v4, v4, v73, v74 bitop3:0x96\nv_bitop3_b32 v5, v5, v77, v78 bitop3:0x96")
    a("v_xor_b32 v4, v4, v75\nv_xor_b32 v5, v5, v79")
    dpp("v_xor_b32", 14, 4, 4, "row_ror:8")
    dpp("v_xor_b32", 14, 5, 5, "row_ror:8", "0xc")
    swapred("v_xor_b32", (14,), (5,), 16)
    swapred("v_xor_b32", (14,), (5,), 32)
    a("v_bitop3_b32 v14, v14, v12, v13 bitop3:0x96")
    a("s_mov_b64 exec, 0xffff")
    a(f"buffer_store_dwordx4 {q(12)}, v7, {srd(S_WS)}, s{sM+2} offen sc1")
    a("s_mov_b64 exec, -1")
    a("s_branch L_p45b")

    a.label("L_s03")
    for r in range(16): a(f"v_xor_b32 v{8+r}, {r<<4}, v7")
    a(f"s_lshl_b32 s{sT1}, s{sW}, 15\ns_and_b32 s{sT0}, s2, 127\ns_lshl_b32 s{sT0}, s{sT0}, 17")
    a(f"s_lshl_b32 s{sT3}, s{sW}, {12 if cfg.ilv else 15}\ns_add_u32 s{sT0}, s{sT0}, s{sT3}")
    a("s_barrier")
    stamp("b0")
    for r in range(32):
        if r % 4 == 0: a(f"s_add_u32 m0, s{sT1}, {r*1024}\ns_add_u32 s{sT2}, s{sT0}, {r*(4096 if cfg.ilv else 1024)}")
        for (row, first) in ((cfg.pf_ld45, 0), (cfg.pf_ldF, 4)):
            if r == row:
                l = a.newlabel("L_pfl")
                a(f"s_mov_b32 s{sK0}, s{sT0}\ns_mov_b32 s{sK1}, s{sT1}")
                for w_ in range(4 if first == 0 else 3):
                    a(f"s_cmp_lg_u32 s{sW}, {w_}\ns_cbranch_scc1 {l}_{w_}")
                    pf_one(first + w_)
                    a.label(f"{l}_{w_}")
                a(f"s_mov_b32 s{sT0}, s{sK0}\ns_mov_b32 s{sT1}, s{sK1}")
        wn = cfg.wn1 if r < cfg.n1 else (cfg.wn if r < 16 else cfg.wn2)
        if r >= wn: a(f"s_waitcnt vmcnt({wn-1})")
        a(f"buffer_load_dwordx4 v{8+(r&15)}, {srd(S_CKV)}, s{sT2} offen offset:{1024*(r&3)}{nt} lds")
    stamp("ld_iss")
    a(f"s_waitcnt vmcnt({cfg.b2w})")
    a("s_barrier")
    if cfg.pf_b3: a("s_barrier")
    make_tag()
    for kk in range(4):
        a(f"v_add_u32 v4, {4*kk}, v{vS}\nv_xor_b32 v4, v4, v{vI}\nv_lshlrev_b32 v4, 4, v4\nv_lshl_add_u32 v4, v{vI}, 10, v4")
        a(f"v_add_u32 v{20+kk}, {L_QA}, v4")
        a(f"v_lshl_add_u32 v{16+kk}, s{sW}, 15, v4")
    a(f"v_lshlrev_b32 v24, 4, v{vI}\nv_lshl_add_u32 v24, s{sW}, 2, v24\nv_add_u32 v24, {L_MX}, v24")
    a(f"s_lshl_b32 s{sT0}, s{sW}, 10\ns_add_u32 s{sT0}, s{sT0}, {L_PT}")
    a(f"v_lshrrev_b32 v4, 1, v{vS}\nv_lshlrev_b32 v4, 8, v4\nv_lshl_add_u32 v4, v{vI}, 4, v4\nv_and_b32 v5, 1, v{vS}\nv_lshl_add_u32 v4, v5, 2, v4\nv_add_u32 v25, s{sT0}, v4")
    a(f"v_mul_u32_u24 v4, 80, v{vI}\nv_lshl_add_u32 v4, v{vS}, 2, v4\nv_lshl_add_u32 v4, s{sW}, 4, v4\nv_add_u32 v26, {L_LS}, v4")
    a(f"s_mov_b32 s{sC}, {f2u(math.log2(math.e) * 128 ** -0.5)}")
    a("s_waitcnt vmcnt(0)")
    stamp("ckv")
    for ks in range(16):
        for a2 in range(2): a(f"ds_read_b128 {q(64+8*ks+4*a2)}, v{16+(ks&3)} offset:{(ks>>2)*256+16384*a2}")
    a("s_barrier")
    if cfg.prio: a("s_setprio 2")
    for ks in range(16): a(f"ds_read_b128 {q(192+4*ks)}, v{20+(ks&3)} offset:{(ks>>2)*256}")
    for ks in range(16):
        a(f"s_waitcnt lgkmcnt({15-ks})")
        for a2 in range(2): mfma(8+4*a2, 64+8*ks+4*a2, 192+4*ks, "0" if ks == 0 else 8+4*a2)
    stamp("smf")
    a("v_max3_f32 v28, v8, v9, v10\nv_max3_f32 v29, v11, v12, v13\nv_max3_f32 v28, v28, v14, v15\nv_max_f32 v28, v28, v29")
    swapred("v_max_f32", (28,), (29,), 16)
    swapred("v_max_f32", (28,), (29,), 32)
    a(f"v_mul_f32 v28, s{sC}, v28\nv_ceil_f32 v28, v28")
    for k in range(8): a(f"v_fma_f32 v{8+k}, v{8+k}, s{sC}, -v28")
    a("v_cvt_i32_f32 v28, v28")
    for k in range(8): a(f"v_exp_f32 v{8+k}, v{8+k}")
    a("ds_write_b32 v24, v28")
    for a2 in range(2):
        a(f"v_cvt_pk_bf16_f32 v{30+2*a2}, v{8+4*a2}, v{10+4*a2}\nv_cvt_pk_bf16_f32 v{31+2*a2}, v{9+4*a2}, v{11+4*a2}")
        a(f"ds_write2_b32 v25, v{30+2*a2}, v{31+2*a2} offset0:{128*a2} offset1:{128*a2+2}")
    a(f"v_pk_add_f32 {d(8)}, {d(8)}, {d(10)}\nv_pk_add_f32 {d(12)}, {d(12)}, {d(14)}\nv_pk_add_f32 {d(8)}, {d(8)}, {d(12)}\nv_add_f32 v8, v8, v9")
    a("ds_write_b32 v26, v8")
    a("s_waitcnt lgkmcnt(0)")
    a("s_barrier")
    if cfg.prio: a("s_setprio 0")
    a(f"v_and_b32 v4, 7, v{vI}\nv_mul_u32_u24 v4, 272, v4\nv_lshrrev_b32 v5, 3, v{vI}\nv_lshl_add_u32 v4, v5, 7, v4\nv_lshl_add_u32 v4, v{vS}, 5, v4\nv_add_u32 v16, {L_CP}, v4")
    a(f"s_lshl_b32 s{sK3}, s{sB45}, 6\ns_add_u32 s{sK3}, s{sK3}, s{sFS}\ns_lshl_b32 s{sK3}, s{sK3}, 10\ns_lshl_b32 s{sT1}, s{sW}, 8\ns_add_u32 s{sK3}, s{sK3}, s{sT1}\ns_add_u32 s{sK2}, s{sK3}, {WS_H4}\ns_add_u32 s{sK3}, s{sK3}, {WS_H5}")
    a(f"s_lshl_b32 s{sK0}, s{sFS}, 15\ns_add_u32 s{sK0}, s{sK0}, s{sT1}\ns_add_u32 s{sK1}, s{sK0}, 4096")
    a(f"v_lshlrev_b32 v17, 10, v{vS}\nv_lshl_add_u32 v17, v{vI}, 4, v17\nv_lshlrev_b32 v18, 12, v{vS}\nv_lshl_add_u32 v18, v{vI}, 4, v18")
    a(f"s_lshl_b32 s{sM}, s{sB45}, 16\ns_add_u32 s{sM}, s{sM}, s{sT1}\ns_add_u32 s{sM}, s{sM}, {WS_H4}\ns_lshl_b32 s{sM+1}, s{sB45}, 10\ns_add_u32 s{sM+1}, s{sM+1}, s{sT1}")
    a(f"s_add_u32 s{sT0}, s{sT1}, {L_HS}\nv_and_b32 v4, 1, v{vS}\nv_lshlrev_b32 v4, 3, v4\nv_lshl_add_u32 v4, v{vI}, 4, v4\nv_add_u32 v19, s{sT0}, v4")
    a(f"v_and_b32 v4, 1, v{vI}\nv_lshlrev_b32 v4, 4, v4\nv_mov_b32 v5, 0x3f80\nv_lshlrev_b32 v4, v4, v5\nv_bfe_u32 v5, v{vI}, 1, 2")
    for k in range(4): a(f"v_cmp_eq_u32 vcc, {k}, v5\nv_cndmask_b32 v{28+k}, 0, v4, vcc")
    a(f"s_mov_b32 s{sDG+1}, 0")
    a(f"buffer_load_dwordx4 {q(44)}, v18, {srd(S_X)}, s{sM+1} offen")
    a(f"v_lshlrev_b32 v6, 13, v{vS}\nv_lshl_add_u32 v6, v{vI}, 4, v6")
    a(f"s_lshl_b32 s{sT0}, s{sFS}, 16\ns_lshl_b32 s{sT1}, s{sW}, 8\ns_add_u32 s{sT0}, s{sT0}, s{sT1}")
    def wo_loads(lo, hi):
        for n in range(lo, hi):
            ks, r4, r = n >> 3, (n >> 2) & 1, n & 3
            if r == 0 or n == lo: a(f"s_add_u32 s{sT1}, s{sT0}, {(32*ks+4*r4)*1024}")
            a(f"buffer_load_dwordx4 {q(192+4*n)}, v6, {srd(S_WO)}, s{sT1} offen offset:{1024*r}{nt2}")
    wo_loads(0, cfg.wo0)
    a("s_barrier")
    wo_loads(cfg.wo0, max(cfg.wo0, cfg.wo1))
    if cfg.wo1 < 16:
        a("s_barrier")
        wo_loads(max(cfg.wo0, cfg.wo1), 16)
    npw = 0
    if cfg.pf_wo:
        a(f"s_cmp_ge_u32 s{sW}, 2\ns_cbranch_scc1 L_pfw")
        pf_one(4)
        a("s_branch L_pfw2")
        a.label("L_pfw")
        a(f"s_lshl_b32 s{sT1}, s{sH}, 16\ns_lshl_b32 s{sT0}, s{sJ}, 13\ns_add_u32 s{sT0}, s{sT0}, s{sT1}")
        a(f"v_lshlrev_b32 v5, 7, v{vL}\nv_lshl_add_u32 v5, s{sW}, 30, v5\nv_xor_b32 v5, 0x80000000, v5")
        a(f"buffer_load_dword v0, v5, {srd(S_WD)}, s{sT0} offen{cfg.ntpf}")
        a.label("L_pfw2")
        npw = 1
    stamp("woiss")
    a(f"s_waitcnt vmcnt({8+npw})")
    transpose(192, 128)
    a(f"s_waitcnt vmcnt({npw})")
    transpose(224, 192)
    stamp("wo")
    a("s_barrier")
    a(f"ds_read_b128 {q(8)}, v16\nds_read_b128 {q(12)}, v16 offset:16")
    for hf in range(2):
        a(f"s_waitcnt lgkmcnt({1-hf})")
        for k in range(4): dpp("v_add_f32", 8+4*hf+k, 8+4*hf+k, 8+4*hf+k, Q1)
    for c in (Q2, HM):
        for k in range(8): dpp("v_add_f32", 8+k, 8+k, 8+k, c)
    stamp("b10")
    for k in range(4): a(f"v_cvt_pk_bf16_f32 v{20+k}, v{8+2*k}, v{9+2*k}")
    for k in range(4): a(f"v_mov_b32_dpp v{24+k}, v{20+k} row_ror:8 row_mask:0xf bank_mask:0xf")
    for ks in range(2):
        for i in range(8):
            mfma(64+4*i, 20+4*ks, (128 if ks == 0 else 192)+4*i, "0" if ks == 0 else 64+4*i)
    a("s_mov_b64 exec, 0xffff")
    for k in range(4): a(f"v_cvt_pk_bf16_f32 v{8+k}, v{64+8*k}, v{68+8*k}")
    a(f"buffer_store_dwordx4 {q(8)}, v7, {srd(S_WS)}, s{sK2} offen sc1")
    a("s_mov_b64 exec, -1")
    stamp("h4pub")
    a(f"s_cmp_ge_u32 s{sH}, 28\ns_cbranch_scc1 L_fin")
    a("s_branch L_f03")

    a.label("L_p45b")
    pf_range(cfg.pf_ost)
    wuv_loads(cfg.wuv1, 16)
    npo = 0
    a(f"v_and_b32 v4, 7, v{vI}\nv_lshl_add_u32 v4, v4, 2, v{vS}\nv_lshlrev_b32 v17, 11, v4")
    a(f"s_lshl_b32 s{sK2}, s{sB45}, 16\ns_lshr_b32 s{sT1}, s{sH}, 4\ns_lshl_b32 s{sT1}, s{sT1}, 10\ns_add_u32 s{sK2}, s{sK2}, s{sT1}\ns_lshl_b32 s{sT1}, s{sK0}, 8\ns_add_u32 s{sK2}, s{sK2}, s{sT1}")
    a(f"s_and_b32 s{sT1}, s{sH}, 15\ns_lshl_b32 s{sT1}, s{sT1}, 4\ns_add_u32 s{sK2}, s{sK2}, s{sT1}\ns_add_u32 s{sK2}, s{sK2}, {WS_REC}")
    a(f"v_lshlrev_b32 v16, 10, v{vS}\nv_lshl_add_u32 v16, v{vI}, 4, v16")
    a(f"s_lshl_b32 s{sK1}, s{sH}, 2\ns_add_u32 s{sK1}, s{sK1}, s{sB45}\ns_lshl_b32 s{sK1}, s{sK1}, 15\ns_lshl_b32 s{sT1}, s{sK0}, 8\ns_add_u32 s{sK1}, s{sK1}, s{sT1}\ns_add_u32 s{sK1}, s{sK1}, {WS_O}")
    a(f"v_and_b32 v4, 1, v{vI}\nv_lshlrev_b32 v4, 4, v4\nv_mov_b32 v5, 0xffff\nv_lshlrev_b32 v4, v4, v5\nv_bfe_u32 v5, v{vI}, 1, 2")
    for k in range(4): a(f"v_cmp_eq_u32 vcc, {k}, v5\nv_cndmask_b32 v{12+k}, 0, v4, vcc")
    a(f"s_lshl_b32 s{sT0}, s{sK0}, 8\ns_add_u32 s{sT0}, s{sT0}, {L_CS}")
    a(f"v_and_b32 v4, 1, v{vS}\nv_lshlrev_b32 v4, 3, v4\nv_lshl_add_u32 v4, v{vI}, 4, v4\nv_add_u32 v18, s{sT0}, v4")
    a(f"v_and_b32 v4, 4, v{vI}\nv_add_u32 v4, v4, v{vS}\nv_lshl_add_u32 v19, v4, 4, s{sT0}")
    a(f"s_mul_i32 s{sT0}, s{sK0}, 544\ns_add_u32 s{sT0}, s{sT0}, {L_CP}")
    a(f"v_lshrrev_b32 v4, 3, v{vI}\nv_mul_u32_u24 v4, 272, v4\nv_and_b32 v5, 7, v{vI}\nv_lshl_add_u32 v4, v5, 5, v4\nv_lshrrev_b32 v5, 1, v{vS}\nv_lshl_add_u32 v4, v5, 4, v4\nv_add_u32 v20, s{sT0}, v4")
    a(f"s_mov_b32 s{sM}, 0x00ff00ff\ns_mov_b32 s{sM+1}, 0x00ff00ff\ns_mov_b32 s{sM+2}, 0\ns_mov_b32 s{sM+3}, -1\ns_mov_b32 s{sCNT}, 0")
    stamp("wuviss")
    a(f"s_waitcnt vmcnt({min(8, 16-cfg.wuv1)+npo})")
    stamp("wuv0")
    transpose(192, 128)
    def rec_load(): a(f"buffer_load_dwordx4 {q(96)}, v17, {srd(S_WS)}, s{sK2} offen sc1")
    rec_load()
    a(f"s_waitcnt vmcnt({1+npo})")
    transpose(224, 192)
    stamp("wuv")
    a(f"s_mov_b32 s{sDG+1}, 0\ns_mov_b32 s{sK3}, 0")
    a.label("L_recpoll")
    a("s_waitcnt vmcnt(0)")
    a(f"v_cmp_ne_u32 vcc, s{sTAG}, v99\ns_cbranch_vccz L_recok")
    if cfg.wo1 < 16 and cfg.b9_early:
        a(f"s_cmp_lg_u32 s{sK3}, 0\ns_cbranch_scc1 L_b9a\ns_mov_b32 s{sK3}, 1\ns_barrier")
        a.label("L_b9a")
    a(f"s_sleep {cfg.rsleep}")
    rec_load()
    a(f"s_add_u32 s{sDG+1}, s{sDG+1}, 1\ns_cmp_lt_u32 s{sDG+1}, {SPIN}\ns_cbranch_scc1 L_recpoll")
    fail(7)
    a("s_waitcnt vmcnt(0)")
    a.label("L_recok")
    stamp("rec")
    for t in range(8):
        a(f"s_add_u32 s{sT1}, s{sK1}, {t*4096}")
        a(f"buffer_load_dwordx4 {q(64+4*t)}, v16, {srd(S_WS)}, s{sT1} offen sc1")
    npf = 0
    if cfg.pf_rec:
        pf_range((4, 5, 6))
        a(f"s_cmp_lg_u32 s{sK0}, 3\ns_cbranch_scc1 L_pf7\nv_bfrev_b32 v5, 1\nbuffer_load_dword v0, v5, {srd(S_WD)}, 0 offen")
        a.label("L_pf7")
        npf = 1
    if cfg.wo1 < 16:
        a(f"s_cmp_lg_u32 s{sK3}, 0\ns_cbranch_scc1 L_nob9\ns_mov_b32 s{sK3}, 1\ns_barrier")
        a.label("L_nob9")
    stamp("h3iss")
    dpp("v_max_f32", 24, 96, 96, Q1)
    a(f"v_bitop3_b32 v26, v96, v97, v98 bitop3:0x96")
    dpp("v_max_f32", 24, 24, 24, Q2)
    a(f"v_cndmask_b32 v26, 0, v26, s[{sM}:{sM+1}]")
    dpp("v_max_f32", 24, 24, 24, HM)
    swapred("v_max_f32", (24,), (25,), 16)
    swapred("v_max_f32", (24,), (25,), 32)
    a("v_sub_f32 v24, v96, v24\nv_exp_f32 v24, v24\nv_mul_f32 v25, v24, v97")
    for c in (Q1, Q2, HM): dpp("v_add_f32", 25, 25, 25, c)
    swapred("v_add_f32", (25,), (27,), 16)
    swapred("v_add_f32", (25,), (27,), 32)
    a("v_rcp_f32 v25, v25\nv_mul_f32 v24, v24, v25\nv_cvt_pk_bf16_f32 v24, v24, v24")
    for t in range(8):
        for k in range(4): a(f"v_and_b32_dpp v{160+4*t+k}, v24, v{12+k} row_newbcast:{t} row_mask:0xf bank_mask:0xf")
    for t in range(8):
        a(f"s_waitcnt vmcnt({7-t+npf})")
        mfma(8, 160+4*t, 64+4*t, "0" if t == 0 else 8)
        if t: a(f"v_bitop3_b32 v26, v26, v{60+4*t}, v{61+4*t} bitop3:0x96\nv_bitop3_b32 v26, v26, v{62+4*t}, v{63+4*t} bitop3:0x96")
    a(f"v_bitop3_b32 v26, v26, v92, v93 bitop3:0x96\nv_bitop3_b32 v26, v26, v94, v95 bitop3:0x96")
    stamp("comb")
    dpp("v_xor_b32", 26, 26, 26, Q1)
    a("v_cvt_pk_bf16_f32 v4, v8, v9\nv_cvt_pk_bf16_f32 v5, v10, v11")
    a(f"ds_write_b64 v18, {d(4)}")
    a(f"ds_read_b128 {q(100)}, v19\nds_read_b128 {q(104)}, v19 offset:128")
    if cfg.pf_comb: pf_range((4, 5, 6))
    for c in (Q2, HM, RM): dpp("v_xor_b32", 26, 26, 26, c)
    swapred("v_xor_b32", (26,), (27,), 16)
    swapred("v_xor_b32", (26,), (27,), 32)
    a("v_cmp_ne_u32 vcc, 0, v26")
    for gg in range(2):
        a(f"s_waitcnt lgkmcnt({1-gg})")
        for i in range(8):
            mfma(32+4*i, 100+4*gg, (128 if gg == 0 else 192)+4*i, "0" if gg == 0 else 32+4*i)
        if gg == 0:
            a("s_cbranch_vccz L_h3ok")
            a(f"s_add_u32 s{sCNT}, s{sCNT}, 1\ns_cmp_ge_u32 s{sCNT}, {SPIN}\ns_cbranch_scc1 L_h3fail")
            a(f"s_sleep {cfg.rsleep}\ns_waitcnt lgkmcnt(0)")
            rec_load()
            a("s_branch L_recpoll")
            a.label("L_h3fail")
            fail(3)
            a.label("L_h3ok")
    for k in range(4): a(f"v_cndmask_b32 v{8+k}, v{32+4*k}, v{48+4*k}, s[{sM+2}:{sM+3}]")
    a("s_mov_b32 exec_lo, 0xff0000ff\ns_mov_b32 exec_hi, 0xff0000ff")
    a(f"ds_write_b128 v20, {q(8)}")
    a("s_mov_b64 exec, -1")
    a("s_waitcnt lgkmcnt(0)")
    a("s_barrier")
    if cfg.prio: a("s_setprio 0")
    a(f"v_and_b32 v4, 12, v{vI}\nv_add_u32 v4, v4, v{vS}\nv_mul_u32_u24 v4, {8*3584}, v4\nv_and_b32 v5, 3, v{vI}\nv_lshl_add_u32 v6, v5, 4, v4")
    a(f"s_lshr_b32 s{sT0}, s{sK0}, 1\ns_mul_i32 s{sT0}, s{sT0}, {256*3584}\ns_lshl_b32 s{sT1}, s{sFS}, 6\ns_add_u32 s{sT0}, s{sT0}, s{sT1}")
    a(f"s_cmp_ge_u32 s{sH}, 28\ns_cbranch_scc1 L_fin")
    for n in range(16):
        gg, r = n >> 3, n & 7
        a(f"s_add_u32 s{sT1}, s{sT0}, {(128*gg+r)*3584}")
        a(f"buffer_load_dwordx4 {q(192+4*n)}, v6, {srd(S_WGU)}, s{sT1} offen{nt2}")
    stamp("guiss")

    a(f"s_lshr_b32 s{sT0}, s{sK0}, 1\ns_lshl_b32 s{sT1}, s{sT0}, 9\ns_add_u32 s{sT1}, s{sT1}, {L_HS}")
    a(f"v_and_b32 v4, 12, v{vI}\nv_add_u32 v4, v4, v{vS}\nv_lshl_add_u32 v21, v4, 4, s{sT1}")
    a(f"s_lshl_b32 s{sT0}, s{sT0}, 10\ns_and_b32 s{sT1}, s{sW}, 1\ns_lshl_b32 s{sT1}, s{sT1}, 7\ns_add_u32 s{sT0}, s{sT0}, s{sT1}\ns_add_u32 s{sT0}, s{sT0}, {L_GP}")
    a(f"v_and_b32 v4, 3, v{vI}\nv_lshlrev_b32 v4, 5, v4\nv_lshl_add_u32 v4, v{vS}, 8, v4\nv_add_u32 v22, s{sT0}, v4\nv_add_u32 v23, {L_CG-L_GP}, v22")
    for k in range(4): a(f"v_mov_b32 v{8+k}, 0x3f803f80")
    a("s_waitcnt vmcnt(8)")
    transpose(192, 128)
    for i in range(8): mfma(64+4*i, 8, 128+4*i, "0")
    a("s_waitcnt vmcnt(0)")
    transpose(224, 192)
    for i in range(8): mfma(64+4*i, 8, 192+4*i, 64+4*i)
    a("s_mov_b32 exec_lo, 0x00f0000f\ns_mov_b32 exec_hi, 0xf0000f00")
    for k in range(4): a(f"ds_write2_b32 v23, v{64+8*k}, v{68+8*k} offset0:{2*k} offset1:{2*k+1}")
    a("s_mov_b64 exec, -1\ns_waitcnt lgkmcnt(0)")
    stamp("gu")
    if cfg.prio: a("s_setprio 1")
    a("s_barrier")
    stamp("b12")
    a(f"ds_read_b128 {q(100)}, v21\nds_read_b128 {q(104)}, v21 offset:256")
    for gg in range(2):
        a(f"s_waitcnt lgkmcnt({1-gg})")
        for i in range(8):
            mfma(64+4*i, 100+4*gg, (128 if gg == 0 else 192)+4*i, "0" if gg == 0 else 64+4*i)
    a("s_mov_b32 exec_lo, 0x00f0000f\ns_mov_b32 exec_hi, 0xf0000f00")
    for k in range(4): a(f"ds_write2_b32 v22, v{64+8*k}, v{68+8*k} offset0:{2*k} offset1:{2*k+1}")
    a("s_waitcnt lgkmcnt(0)")
    a("s_barrier")
    a("s_branch L_fin")

    a.label("L_f03")
    def h4_loads():
        for t in range(16):
            a(f"s_add_u32 s{sT1}, s{sM}, {t*4096}")
            a(f"buffer_load_dwordx4 {q(64+4*t)}, v17, {srd(S_WS)}, s{sT1} offen sc1")
    if cfg.prio: a("s_setprio 2")
    a("s_waitcnt vmcnt(0)")
    if cfg.h4sleep: a(f"s_sleep {cfg.h4sleep}")
    stamp("b11")
    h4_loads()
    for r4 in range(2):
        for r in range(4):
            a(f"buffer_load_dwordx4 {q(192+16*r4+4*r)}, v6, {srd(S_WD)}, s{sK0+r4} offen offset:{1024*r}{nt2}")
    a(f"v_lshlrev_b32 v21, 2, v{vL}")
    a(f"s_lshl_b32 s{sT0}, s{sW}, 6\ns_add_u32 s{sT0}, s{sT0}, {L_AS}")
    a(f"v_and_b32 v4, 31, v{vL}\nv_lshl_add_u32 v22, v4, 1, s{sT0}\nv_lshl_add_u32 v23, v{vS}, 4, s{sT0}")
    k1 = -2.0 * math.sqrt(2.0/math.pi) * math.log2(math.e)
    a(f"v_mov_b32 v48, {f2u(k1)}\ns_mov_b32 s{sM+2}, 0x3f803f80")
    a.label("L_h4")
    mfma(8, 28, 44, "0")
    for t in range(16):
        a(f"s_waitcnt vmcnt({23-t})")
        mfma(8, 28, 64+4*t, 8)
    a(f"v_cvt_pk_bf16_f32 v4, v8, v9\nv_cvt_pk_bf16_f32 v5, v10, v11")
    a(f"v_cmp_u_f32 vcc, v8, v9\nv_cmp_u_f32 s[{sEX}:{sEX+1}], v10, v11")
    a(f"ds_write_b64 v19, {d(4)}")
    a(f"s_or_b64 vcc, vcc, s[{sEX}:{sEX+1}]\ns_cbranch_vccz L_h4ok")
    a(f"s_sleep {cfg.rsleep}")
    h4_loads()
    a("s_waitcnt vmcnt(0)")
    a(f"s_add_u32 s{sDG+1}, s{sDG+1}, 1\ns_cmp_lt_u32 s{sDG+1}, {SPIN}\ns_cbranch_scc1 L_h4")
    fail(4)
    a.label("L_h4ok")
    a("s_waitcnt lgkmcnt(0)")
    stamp("h4red")
    a("s_barrier")
    if cfg.prio: a("s_setprio 0")
    a(f"ds_read_b128 {q(32)}, v7 offset:{L_HS}")
    for p in range(8): a(f"ds_read_b32 v{100+p}, v21 offset:{L_CG+256*p}")
    a(f"v_lshrrev_b32 v4, 3, v{vI}\nv_lshl_add_u32 v4, v{vS}, 1, v4\nv_lshlrev_b32 v4, 10, v4\nv_and_b32 v5, 7, v{vI}\nv_lshl_add_u32 v16, v5, 4, v4")
    a(f"s_lshl_b32 s{sK2}, s{sB45}, 16\ns_lshl_b32 s{sT1}, s{sFS}, 7\ns_add_u32 s{sK2}, s{sK2}, s{sT1}\ns_add_u32 s{sK2}, s{sK2}, {WS_H5}")
    a(f"s_and_b32 s{sT0}, s{sT1}, 0x3ff\ns_add_u32 s{sT0}, s{sT0}, {L_HS}\nv_lshl_add_u32 v19, v5, 4, s{sT0}")
    a(f"ds_read_b128 {q(44)}, v19")
    a(f"v_and_b32 v4, 1, v{vS}\nv_lshlrev_b32 v4, 3, v4\nv_lshl_add_u32 v18, v5, 4, v4")
    a(f"s_lshl_b32 s{sK1}, s{sB45}, 10\ns_add_u32 s{sK1}, s{sK1}, s{sT1}")
    a("s_waitcnt lgkmcnt(9)")
    a(f"v_dot2_f32_bf16 v40, v32, s{sM+2}, 0\nv_dot2_f32_bf16 v41, v32, v32, 0")
    for k in range(1, 4): a(f"v_dot2_f32_bf16 v40, v{32+k}, s{sM+2}, v40\nv_dot2_f32_bf16 v41, v{32+k}, v{32+k}, v41")
    a(f"s_mov_b32 s{sM}, 0xff\ns_mov_b32 s{sM+1}, 0\ns_mov_b32 s{sDG+1}, 0\ns_waitcnt lgkmcnt(0)")
    adds = capture(lambda: a(f"v_pk_add_f32 {d(100)}, {d(100)}, {d(102)}\nv_pk_add_f32 {d(104)}, {d(104)}, {d(106)}\nv_pk_add_f32 {d(100)}, {d(100)}, {d(104)}\nv_add_f32 v100, v100, v101"))
    for c in (Q1, Q2, HM, RM):
        dpp("v_add_f32", 40, 40, 40, c); dpp("v_add_f32", 41, 41, 41, c); a.lines.append(adds.pop(0))
    swapred("v_add_f32", (40, 41), (42, 43), 16)
    swapred("v_add_f32", (40, 41), (42, 43), 32)
    ln_stats(40, 41)
    a("v_mul_f32 v40, v40, v100")
    a("s_waitcnt vmcnt(0)")
    transpose(192, 128)
    for k in range(4): a(f"v_cndmask_b32 v{44+k}, 0, v{44+k}, s[{sM}:{sM+1}]")
    stamp("ln2")
    if cfg.prio: a("s_setprio 1")
    a("s_barrier")
    stamp("b13")
    for p in range(8): a(f"ds_read_b32 v{32+p}, v21 offset:{L_GP+256*p}")
    a("s_waitcnt lgkmcnt(4)")
    a(f"v_pk_add_f32 {d(32)}, {d(32)}, {d(34)}")
    a("s_waitcnt lgkmcnt(0)")
    a(f"v_pk_add_f32 {d(36)}, {d(36)}, {d(38)}\nv_pk_add_f32 {d(32)}, {d(32)}, {d(36)}\nv_add_f32 v24, v32, v33\nv_fma_f32 v24, v24, v41, v40")
    a("v_mov_b32 v25, v24\nv_permlane32_swap_b32 v24, v25")
    a(f"v_mul_f32 v26, v24, v24\nv_mul_f32 v25, v24, v25\nv_fmamk_f32 v26, v26, {f2u(k1*0.044715)}, v48\nv_mul_f32 v26, v26, v24")
    a("v_exp_f32 v26, v26\nv_add_f32 v26, 1.0, v26\nv_rcp_f32 v26, v26\nv_mul_f32 v26, v26, v25\nv_cvt_pk_bf16_f32 v26, v26, v26")
    a(f"ds_write_b16 v22, v26\nds_read_b128 {q(32)}, v23")
    a("s_waitcnt lgkmcnt(0)")
    for i in range(8): mfma(64+4*i, 32, 128+4*i, "0")
    a("s_mov_b64 exec, 0xffff")
    for k in range(4): a(f"v_cvt_pk_bf16_f32 v{8+k}, v{64+8*k}, v{68+8*k}")
    a(f"buffer_store_dwordx4 {q(8)}, v7, {srd(S_WS)}, s{sK3} offen sc1")
    a("s_mov_b64 exec, -1")
    stamp("h5pub")
    a(f"s_cmp_ge_u32 s{sFS}, 8\ns_cbranch_scc1 L_fin")
    a(f"s_cmp_lg_u32 s{sW}, 0\ns_cbranch_scc1 L_fin")
    a("s_waitcnt vmcnt(0)")
    stamp("h5drain")
    a.label("L_h5")
    for t in range(7):
        a(f"s_add_u32 s{sT1}, s{sK2}, {t*8192}")
        a(f"buffer_load_dwordx4 {q(64+4*t)}, v16, {srd(S_WS)}, s{sT1} offen sc1")
    mfma(8, 28, 44, "0")
    for t in range(7):
        a(f"s_waitcnt vmcnt({6-t})")
        mfma(8, 28, 64+4*t, 8)
    for k in range(4): dpp("v_add_f32", 8+k, 8+k, 8+k, "row_ror:8")
    a(f"v_cmp_u_f32 vcc, v8, v9\nv_cmp_u_f32 s[{sEX}:{sEX+1}], v10, v11")
    a("v_cvt_pk_bf16_f32 v24, v8, v9\nv_cvt_pk_bf16_f32 v25, v10, v11")
    a(f"s_or_b64 vcc, vcc, s[{sEX}:{sEX+1}]\ns_cbranch_vccz L_h5ok")
    a(f"s_sleep {cfg.rsleep}")
    a(f"s_add_u32 s{sDG+1}, s{sDG+1}, 1\ns_cmp_lt_u32 s{sDG+1}, {SPIN}\ns_cbranch_scc1 L_h5")
    fail(5)
    a.label("L_h5ok")
    a("s_mov_b32 exec_lo, 0x00ff00ff\ns_mov_b32 exec_hi, 0")
    a(f"buffer_store_dwordx2 {d(24)}, v18, {srd(S_OUT)}, s{sK1} offen")
    a("s_cmp_lg_u32 s2, 0\ns_cbranch_scc1 L_fin")
    a("s_mov_b64 exec, 1")
    a(f"v_mov_b32 v4, s{sEP}\nv_mov_b32 v5, 0\nbuffer_store_dword v4, v5, {srd(S_WS)}, 0 offen sc1")

    a.label("L_fin")
    if cfg.echo:
        stamp("end")
        a(f"s_cmp_lg_u32 s2, 0\ns_cbranch_scc1 L_end\ns_cmp_lg_u32 s{sW}, {cfg.echo_w}\ns_cbranch_scc1 L_end")
        a("s_memrealtime s[90:91]\ns_waitcnt lgkmcnt(0)")
        a(f"s_sub_u32 s92, s{sST+2}, s{sST}\ns_lshl_b32 s92, s92, 1\ns_min_u32 s92, s92, 20000")
        a.label("L_echo")
        a("s_memrealtime s[94:95]\ns_waitcnt lgkmcnt(0)\ns_sub_u32 s94, s94, s90\ns_cmp_lt_u32 s94, s92\ns_cbranch_scc1 L_echo")
    elif cfg.stamps:
        stamp("end")
        a("s_mov_b64 exec, -1\ns_waitcnt lgkmcnt(0)")
        for k in range(8): a(f"v_writelane_b32 v4, s{sST+2*k}, {k}")
        a(f"v_writelane_b32 v4, s{sCNT}, 10\nv_writelane_b32 v4, s{sDG}, 11\nv_writelane_b32 v4, s{sDG+1}, 12")
        a(f"s_lshl_b32 s{sT0}, s2, 3\ns_add_u32 s{sT0}, s{sT0}, s{sW}\ns_lshl_b32 s{sT0}, s{sT0}, 6\ns_add_u32 s{sT0}, s{sT0}, {WS_STAMP}")
        a(f"v_lshlrev_b32 v5, 2, v{vL}\ns_mov_b64 exec, 0xffff")
        a(f"buffer_store_dword v4, v5, {srd(S_WS)}, s{sT0} offen")
    a.label("L_end")
    a("s_endpgm")
    a.label("L_codeend")
    lines, added = hz.pad(a.lines)
    hdr = open("sequential_preLN__compressed_kv_cla__geglu_ffn__decode.s.ref").read().split("; Override launch")[0]
    s = hdr + f"; @launch grid=(256,1,1) block=(512,1,1) lds={LDS_BYTES}\n" + TARGET + "\n".join(lines) + "\n" + kernel_desc(KNAME, 256)
    return s, added

if __name__ == "__main__":
    out = sys.argv[1] if len(sys.argv) > 1 else "k.s"
    class C(Cfg): pass
    for kv in sys.argv[2:]:
        k, v = kv.split("=", 1)
        setattr(C, k, eval(v))
    s, added = gen(C)
    open(out, "w").write(s)
    print("written", out, "nops added", added, "lines", s.count("\n"), "lds", LDS_BYTES)
```

```python
import sys, struct, math
from asmlib import *
import hz

def f2u(x): return struct.unpack("<I", struct.pack("<f", x))[0]

WS_EPOCH = 0
WS_FLAGS = 0x1000
WS_H1    = 0x10000
WS_H2    = 0x100000
WS_O     = 0x200000
WS_REC   = 0x600000
WS_H4    = 0x700000
WS_H5    = 0x740000
WS_STAMP = 0x800000
L_QA = 131072
MB = 147456
L_MX = MB
L_LS = MB+256
L_PT = L_LS+1280
L_QS = L_PT+4096
L_SIG = L_QS+1088
L_CS = L_SIG+16
L_CP = L_CS+1024
LDS_BYTES = L_CP+8*272
L_GP = 0; L_CG = 2048; L_HS = 8192; L_AS = 9216

S_X, S_WQ, S_WUK, S_CKV, S_WS, S_WUV, S_WO, S_WGU, S_WD, S_OUT, S_DBG = 4, 8, 12, 16, 20, 24, 28, 32, 36, 40, 44
P16, P8, PWS = 48, 64, 72
sW = 3
sH, sJ, sTAG, sPLO, sPHI, sCNT, sB45, sFS = 74, 75, 76, 77, 78, 79, 80, 81
sT0, sT1, sT2, sT3 = 82, 83, 84, 85
sST = 86
sM = 48
sK0, sK1, sK2, sK3 = 56, 57, 58, 59
sEX = 60
sC, sEP, sDG = 62, 63, 64

class Cfg:
    nt = ""
    nt2 = ""
    ntpf = ""
    stamps = False
    dbgstamps = False
    echo = False
    echo_w = 0
    codepf = True
    wn = 10
    wn1 = 5
    n1 = 8
    wn2 = 10
    ilv = False
    b2w = 6
    ld_at = "pub"
    pf_ld45 = -1
    pf_ldF = -1
    wo0 = 0
    pf_b3 = ()
    pf_b4 = (0,1,2,3)
    pf_tr = ()
    pf_ost = ()
    b9_early = False
    wuv_weave = True
    probe4 = False
    flsleep = 0
    gu0 = 0
    dn_late = True
    tr_late = False
    trsleep = 0
    recsleep = 0
    rot4 = False
    dn_at = 12
    sel3 = False
    sel4 = False
    pf_comb = False
    wo1 = 0
    pf_wo = True
    pf_rec = False
    wuv1 = 0
    fullline = True
    rsleep = 2
    flag_first = False
    wuk_at = 'ln'
    h1sleep = 0
    h4sleep = 12
    prio = True
    spin = 200000
    diag = 0

def gen(cfg=Cfg):
    SPIN = cfg.spin
    a = Asm()
    nt, nt2 = cfg.nt, cfg.nt2
    vL, vI, vS = 1, 2, 3
    def stamp(name):
        if cfg.stamps and name in cfg.stamps:
            k = cfg.stamps.index(name)
            a(f"s_memrealtime s[{sST+2*k}:{sST+2*k+1}]")
    def q(r): return f"v[{r}:{r+3}]"
    def d(r): return f"v[{r}:{r+1}]"
    def srd(s): return f"s[{s}:{s+3}]"
    def base(s, p): a(f"s_mov_b32 s{s}, s{p}\ns_mov_b32 s{s+1}, s{p+1}")
    def transpose(src, dst):
        for dw in range(4):
            for k2 in range(4):
                r0 = src + 4*(2*k2) + dw; r1 = src + 4*(2*k2+1) + dw
                a(f"v_perm_b32 v{dst+4*(2*dw)+k2}, v{r1}, v{r0}, s{sPLO}")
                a(f"v_perm_b32 v{dst+4*(2*dw+1)+k2}, v{r1}, v{r0}, s{sPHI}")
    def mfma(dst, A, B, C):
        c = q(C) if isinstance(C, int) else C
        a(f"v_mfma_f32_16x16x32_bf16 {q(dst)}, {q(A)}, {q(B)}, {c}")
    def capture(fn):
        n = len(a.lines); fn(); out = a.lines[n:]; del a.lines[n:]; return out
    def weave(mf, fill, per=2):
        fill = list(fill)
        for m in mf:
            a.lines.append(m)
            k = 0
            while fill and k < per:
                l = fill.pop(0); a.lines.append(l)
                if not l.strip().startswith("s_waitcnt"): k += 1
        a.lines.extend(fill)
    def swapred(op, regs, tmps, which):
        for r, t in zip(regs, tmps): a(f"v_mov_b32 v{t}, v{r}")
        for r, t in zip(regs, tmps): a(f"v_permlane{which}_swap_b32 v{r}, v{t}")
        for r, t in zip(regs, tmps): a(f"{op} v{r}, v{r}, v{t}")
    def dpp(op, dst, src, other, ctl, bank="0xf"):
        a(f"{op}_dpp v{dst}, v{src}, v{other} {ctl} row_mask:0xf bank_mask:{bank}")
    Q1, Q2, HM, RM = "quad_perm:[1,0,3,2]", "quad_perm:[2,3,0,1]", "row_half_mirror", "row_mirror"
    def ln_stats(vs, vq):
        a(f"v_mul_f32 v{vs}, {f2u(-1.0/512)}, v{vs}")
        a(f"v_mul_f32 v{vq}, {f2u(1.0/512)}, v{vq}")
        a(f"v_fma_f32 v{vq}, -v{vs}, v{vs}, v{vq}")
        a(f"v_max_f32 v{vq}, 0, v{vq}")
        a(f"v_add_f32 v{vq}, {f2u(1e-5)}, v{vq}")
        a(f"v_rsq_f32 v{vq}, v{vq}")
        a(f"v_mul_f32 v{vs}, v{vs}, v{vq}")
    def pkfma(r, vs, vq):
        a(f"v_pk_fma_f32 {d(r)}, {d(r)}, {d(vs)}, {d(vs)} op_sel:[0,1,0] op_sel_hi:[1,1,0]")
    def fail(code):
        a(f"v_mov_b32 v4, {code}\nv_mov_b32 v5, 0\nbuffer_store_dword v4, v5, {srd(S_DBG)}, 0 offen offset:{4*code}")
    def spin_check(lbl_retry, code):
        a(f"s_add_u32 s{sCNT}, s{sCNT}, 1\ns_cmp_lt_u32 s{sCNT}, {SPIN}\ns_cbranch_scc1 {lbl_retry}")
        fail(code)
    def make_tag():
        a("s_waitcnt lgkmcnt(0)")
        a(f"s_mul_i32 s{sEP}, s{sTAG}, 0x9E3779B1\ns_add_u32 s{sEP}, s{sEP}, 0x7F4A7C15\ns_and_b32 s{sTAG}, s{sEP}, 0xBFFFBFFF")
    def rest_srds():
        base(S_CKV, P16+2); base(S_WS, PWS); base(S_WUV, P16+8); base(S_WO, P16+10); base(S_WD, P8+2); base(S_OUT, P8+4); base(S_DBG, P8+6)
        a(f"s_bitcmp1_b32 s{sW}, 0\ns_cselect_b32 s{S_WGU}, s{P8}, s{P16+14}\ns_cselect_b32 s{S_WGU+1}, s{P8+1}, s{P16+15}")
        a(f"s_load_dword s{sTAG}, s[{PWS}:{PWS+1}], {WS_EPOCH}")
    def consts():
        for g in range(4):
            m = 0x000F000F << (4*g)
            a(f"s_mov_b32 s{sM+2*g}, {m:#x}\ns_mov_b32 s{sM+2*g+1}, {m:#x}")

    kernel_begin(a, KNAME)
    a.label("L_code0")
    stamp("start")
    a("s_cmp_ge_u32 s2, 256\ns_cbranch_scc1 L_end")
    a(f"s_load_dwordx16 s[{P16}:{P16+15}], s[0:1], 0\ns_load_dwordx8 s[{P8}:{P8+7}], s[0:1], 64\ns_load_dwordx2 s[{PWS}:{PWS+1}], s[0:1], 96")
    a(f"v_lshrrev_b32 v4, 6, v0\nv_and_b32 v{vL}, 63, v0")
    a(f"v_readfirstlane_b32 s{sW}, v4")
    if cfg.codepf:
        a(f"s_cmp_lg_u32 s{sW}, 6\ns_cbranch_scc1 L_nopf")
        a(f"s_getpc_b64 s[{sT0}:{sT0+1}]")
        a.label("L_pc")
        a(f"s_sub_u32 s{sT0}, s{sT0}, L_pc-L_code0\ns_subb_u32 s{sT0+1}, s{sT0+1}, 0\ns_lshr_b32 s{sT2}, s2, 3\ns_lshl_b32 s{sT2}, s{sT2}, 9")
        a(f"v_lshlrev_b32 v4, 7, v{vL}\nv_add_u32 v5, s{sT2}, v4\ns_mov_b32 exec_hi, 0\nv_mov_b32 v5, v4\ns_mov_b32 exec_hi, -1")
        a(f"v_cmp_gt_u32 vcc, L_codeend-L_code0, v5\ns_mov_b32 exec_hi, 15\ns_and_b64 exec, exec, vcc")
        a(f"global_load_dword v63, v5, s[{sT0}:{sT0+1}]\ns_mov_b64 exec, -1")
        a.label("L_nopf")
    a(f"v_and_b32 v{vI}, 15, v0\nv_bfe_u32 v{vS}, v0, 4, 2")
    a(f"s_and_b32 s{sH}, s2, 7\ns_lshr_b32 s{sT0}, s2, 6\ns_lshl_b32 s{sT0}, s{sT0}, 3\ns_or_b32 s{sH}, s{sH}, s{sT0}")
    a(f"s_bfe_u32 s{sJ}, s2, 0x30003")
    def tails(names):
        for s_, n in names: a(f"s_mov_b32 s{s_+2}, {SIZE[n]}\ns_mov_b32 s{s_+3}, 0x20000")
    def late_consts():
        tails(((S_WUK,'wuk'),(S_CKV,'ckv'),(S_WS,'ws'),(S_WUV,'wuv'),(S_WO,'wo'),(S_WGU,'wg'),(S_WD,'wd'),(S_OUT,'out'),(S_DBG,'dbg')))
        a(f"s_mov_b32 s{sPLO}, 0x05040100\ns_mov_b32 s{sPHI}, 0x07060302\ns_mov_b32 s{sCNT}, 0")
        a(f"s_and_b32 s{sB45}, s{sJ}, 3")
        a(f"s_lshr_b32 s{sFS}, s{sJ}, 2\ns_lshl1_add_u32 s{sFS}, s{sH}, s{sFS}")
        if cfg.stamps:
            for k in range(1, 8):
                if k >= len(cfg.stamps) or cfg.stamps[k] not in ("karg", "w0_iss"): a(f"s_mov_b32 s{sST+2*k}, 0")
    tails(((S_X,'x'),(S_WQ,'wq')))
    if cfg.stamps:
        for k in range(1, len(cfg.stamps)):
            if cfg.stamps[k] in ("karg", "w0_iss"): a(f"s_mov_b32 s{sST+2*k}, 0")
    a(f"s_cmp_lg_u32 s{sW}, 4\ns_cbranch_scc1 L_not0")

    if cfg.prio: a("s_setprio 3")
    a(f"v_and_b32 v4, 3, v{vL}\nv_lshlrev_b32 v4, 10, v4")
    a(f"v_lshrrev_b32 v5, 2, v{vL}\nv_lshl_add_u32 v5, v5, 4, v4")
    a(f"v_lshl_add_u32 v4, v{vS}, 4, v4")
    a(f"v_lshlrev_b32 v6, 16, v{vS}\nv_lshl_add_u32 v6, v{vI}, 4, v6")
    a(f"v_lshlrev_b32 v7, 13, v{vI}\nv_lshl_add_u32 v7, v{vS}, 4, v7")
    a(f"s_lshl_b32 s{sT2}, s{sJ}, 7")
    a(f"s_lshl_b32 s{sT0}, s{sJ}, 19\ns_lshl_b32 s{sT1}, s{sH}, 8\ns_add_u32 s{sT0}, s{sT0}, s{sT1}")
    a("s_waitcnt lgkmcnt(0)")
    stamp("karg")
    base(S_X, P16); base(S_WQ, P16+4)
    for k in range(4): a(f"buffer_load_dwordx4 {q(8+4*k)}, v5, {srd(S_X)}, 0 offen offset:{256*k}")
    for k in range(2): a(f"buffer_load_dwordx4 {q(24+4*k)}, v4, {srd(S_X)}, s{sT2} offen offset:{64*k}")
    a(f"s_add_u32 s{sT2}, s{sT0}, {32*8192}\ns_mov_b32 s{sT1}, s{sT0}")
    for ks in range(2):
        for r in range(8):
            sr = sT1 if ks == 0 else sT2
            a(f"buffer_load_dwordx4 {q(64+32*ks+4*r)}, v6, {srd(S_WQ)}, s{sr} offen{nt}")
            if r < 7: a(f"s_addk_i32 s{sr}, 0x2000")
    stamp("w0_iss")
    late_consts()
    base(S_WUK, P16+6)
    def wuk_loads(vo, so):
        for n_ in range(4):
            for ks in range(4):
                a(f"buffer_load_dwordx4 {q(192+16*n_+4*ks)}, v{vo}, {srd(S_WUK)}, s{so} offen offset:{64*ks}{nt}")
            if n_ < 3: a(f"s_add_u32 s{so}, s{so}, {16*8192}")
    nuk = 16 if cfg.wuk_at == "iss" else 0
    if nuk: wuk_loads(7, sT0)
    else: a(f"v_mov_b32 v187, v7\ns_mov_b32 s{sT3}, s{sT0}")
    if cfg.ld_at == "iss": a("s_barrier")
    rest_srds(); consts()
    def qa_pub_addr(dst):
        a(f"v_lshrrev_b32 v4, 2, v{vI}\nv_lshlrev_b32 v4, 1, v4\nv_lshrrev_b32 v5, 1, v{vS}\nv_add_u32 v4, v4, v5")
        a(f"s_lshl_b32 s{sT0}, s{sJ}, 3\ns_and_b32 s{sT1}, s{sH}, 15\ns_xor_b32 s{sT0}, s{sT0}, s{sT1}")
        a(f"v_xor_b32 v4, s{sT0}, v4\nv_lshlrev_b32 v4, 4, v4")
        a(f"v_and_b32 v5, 1, v{vS}\nv_lshl_add_u32 v4, v5, 3, v4")
        a(f"v_and_b32 v5, 3, v{vI}\nv_lshl_add_u32 v{dst}, v5, 15, v4")
        a(f"s_lshl_b32 s{sK3}, s{sH}, 10\ns_add_u32 s{sK3}, s{sK3}, {WS_H2}")
    a(f"s_mov_b32 s{sK0}, 0x3f803f80")
    a("v_mov_b32 v32, 0\nv_mov_b32 v33, 0")
    a(f"s_waitcnt vmcnt({18+nuk})")
    stamp("w0_x")
    for k in range(16):
        a(f"v_dot2_f32_bf16 v32, v{8+k}, s{sK0}, v32\nv_dot2_f32_bf16 v33, v{8+k}, v{8+k}, v33")
    for c in ("row_ror:4", "row_ror:8"):
        dpp("v_add_f32", 32, 32, 32, c); dpp("v_add_f32", 33, 33, 33, c)
    swapred("v_add_f32", (32, 33), (34, 35), 16)
    swapred("v_add_f32", (32, 33), (34, 35), 32)
    ln_stats(32, 33)
    a(f"s_waitcnt vmcnt({16+nuk})")
    for k in range(8): a(f"v_lshlrev_b32 v{8+2*k}, 16, v{24+k}\nv_and_b32 v{9+2*k}, 0xffff0000, v{24+k}")
    for k in range(8): pkfma(8+2*k, 32, 33)
    for k in range(8): a(f"v_cvt_pk_bf16_f32 v{24+k}, v{8+2*k}, v{9+2*k}")
    for g in range(4):
        for k in range(8):
            a(f"v_cndmask_b32 v{32+8*g+k}, 0, v{24+k}, s[{sM+2*g}:{sM+2*g+1}]")
    stamp("w0_ln")
    if cfg.wuk_at == "ln": wuk_loads(187, sT3)
    a(f"v_lshlrev_b32 v7, 4, v{vL}")
    a(f"s_lshl_b32 s{sK1}, s{sH}, 14\ns_add_u32 s{sK1}, s{sK1}, {WS_H1}\ns_add_u32 s{sK2}, s{sK1}, 8192")
    a(f"s_lshl_b32 s{sT0}, s{sJ}, 11\ns_add_u32 s{sT0}, s{sT0}, s{sK1}")
    make_tag()
    a(f"v_mov_b32 v18, s{sTAG}\nv_mov_b32 v19, s{sTAG}\nv_mov_b32 v22, s{sTAG}\nv_mov_b32 v23, s{sTAG}")
    for ks in range(2):
        a(f"s_waitcnt vmcnt({8+nuk-8*ks+(16 if ((ks == 1 and cfg.wuk_at == 'wq0') or cfg.wuk_at == 'ln') else 0)})")
        if ks == 0: stamp("w0_wq0")
        if ks == 1: stamp("w0_wq")
        if (ks == 0 and cfg.wuk_at == "wq0") or (ks == 1 and cfg.wuk_at == "wq1"): wuk_loads(187, sT3)
        dst = 128 if ks == 0 else 64
        transpose(64+32*ks, dst)
        for g in range(4):
            for t in range(2):
                mfma(8+4*t, 32+8*g+4*ks, dst+4*(4*t+g), "0" if (ks == 0 and g == 0) else 8+4*t)
    for t in range(2):
        r = 8+4*t; o = 16+4*t
        a(f"v_cvt_pk_bf16_f32 v{o}, v{r}, v{r+1}\nv_cvt_pk_bf16_f32 v{o+1}, v{r+2}, v{r+3}")
        a(f"buffer_store_dwordx4 {q(o)}, v7, {srd(S_WS)}, s{sT0} offen offset:{1024*t} sc1")
    stamp("w0_pub")
    if cfg.wuk_at == "pub": wuk_loads(187, sT3)
    if cfg.ld_at == "pub": a("s_barrier")
    a(f"v_and_b32 v4, 1, v{vI}\nv_lshlrev_b32 v4, 4, v4\nv_mov_b32 v5, 0x3f80\nv_lshlrev_b32 v4, v4, v5\nv_and_b32 v5, 2, v{vI}")
    a("v_cmp_eq_u32 vcc, 0, v5\nv_cndmask_b32 v5, 0, v4, vcc\nv_cndmask_b32 v4, v4, 0, vcc")
    for g in range(4):
        a(f"v_cndmask_b32 v{168+4*g}, 0, v5, s[{sM+2*g}:{sM+2*g+1}]\nv_cndmask_b32 v{169+4*g}, 0, v4, s[{sM+2*g}:{sM+2*g+1}]")
        a(f"v_mov_b32 v{170+4*g}, 0\nv_mov_b32 v{171+4*g}, 0")
    qa_pub_addr(164)
    a(f"v_mov_b32 v186, {L_SIG}")
    a(f"v_lshlrev_b32 v166, 11, v{vS}\nv_lshl_add_u32 v166, v{vI}, 4, v166")
    a(f"v_lshlrev_b32 v167, 4, v{vI}\nv_lshl_add_u32 v167, v{vS}, 1, v167\nv_add_u32 v167, {L_QS}, v167")
    a(f"v_and_b32 v184, 3, v{vI}\nv_mul_u32_u24 v184, 272, v184\nv_lshl_add_u32 v184, v{vS}, 4, v184\nv_add_u32 v184, {L_QS}, v184")
    a(f"s_waitcnt vmcnt({16 if cfg.wuk_at == 'pub' else 0})")
    stamp("w0_drain")
    if cfg.h1sleep: a(f"s_sleep {cfg.h1sleep}")
    def h1_loads():
        for u in range(2):
            for pg in range(8):
                a(f"buffer_load_dwordx4 {q(64+32*u+4*pg)}, v166, {srd(S_WS)}, s{sK1+u} offen offset:{256*pg} sc1")
    if cfg.diag & 1:
        if cfg.ld_at == "h1": a("s_barrier")
        a("s_branch L_flok")
    h1_loads()
    if cfg.ld_at == "h1": a("s_barrier")
    a.label("L_h1")
    for u in range(2):
        for pg in range(8):
            n = 8*u+pg; r = 64+4*n
            a(f"s_waitcnt vmcnt({15-n})")
            mfma(8+4*(pg>>2), 168+4*(pg&3), r, "0" if (u == 0 and (pg&3) == 0) else 8+4*(pg>>2))
            if n == 0: a(f"v_xor_b32 v4, s{sTAG}, v{r+2}")
            else: a(f"v_bitop3_b32 v4, v{r+2}, s{sTAG}, v4 bitop3:0xbe")
    stamp("w0_h1")
    a("v_cmp_ne_u32 vcc, 0, v4\ns_cbranch_vccz L_h1ok")
    a(f"s_sleep {cfg.rsleep}")
    h1_loads()
    spin_check("L_h1", 1)
    a("s_waitcnt vmcnt(0)")
    a.label("L_h1ok")
    if cfg.stamps: a(f"s_lshl_b32 s{sCNT}, s{sCNT}, 8")
    for t in range(2):
        for bp in range(2):
            a(f"v_cvt_pk_bf16_f32 v{16+2*t+bp}, v{8+4*t+2*bp}, v{8+4*t+2*bp+1}")
            a(f"ds_write_b16 v167, v{16+2*t+bp} offset:{272*(2*bp)+8*t}")
            a(f"ds_write_b16_d16_hi v167, v{16+2*t+bp} offset:{272*(2*bp+1)+8*t}")
    for ks in range(4): a(f"ds_read_b128 {q(32+4*ks)}, v184 offset:{64*ks}")
    a("ds_read_b32 v10, v186")
    a(f"s_mov_b32 s{sT1}, {WS_FLAGS}")
    for ks in range(4):
        a(f"s_waitcnt lgkmcnt({4-ks})")
        for n_ in range(4):
            mfma(48+4*n_, 192+16*n_+4*ks, 32+4*ks, "0" if ks == 0 else 48+4*n_)
    for n_ in range(4):
        a(f"s_mov_b64 exec, s[{sM+2*n_}:{sM+2*n_+1}]")
        a(f"v_cvt_pk_bf16_f32 v8, v{48+4*n_}, v{49+4*n_}\nv_cvt_pk_bf16_f32 v9, v{50+4*n_}, v{51+4*n_}")
    a("s_mov_b64 exec, -1")
    a.label("L_sig")
    a(f"s_waitcnt lgkmcnt(0)\nv_cmp_ne_u32 vcc, s{sTAG}, v10\ns_cbranch_vccz L_sigok")
    a("ds_read_b32 v10, v186\ns_branch L_sig")
    a.label("L_sigok")
    a(f"buffer_store_dwordx2 {d(8)}, v164, {srd(S_WS)}, s{sK3} offen sc1")
    stamp("w0_qapub")
    if cfg.flsleep: a(f"s_sleep {cfg.flsleep}")
    a.label("L_fl")
    a(f"buffer_load_dwordx4 {q(12)}, v7, {srd(S_WS)}, s{sT1} offen sc1")
    a("s_waitcnt vmcnt(0)")
    a(f"v_xor_b32 v4, s{sTAG}, v12")
    for k in range(1, 4): a(f"v_bitop3_b32 v4, v{12+k}, s{sTAG}, v4 bitop3:0xbe")
    a("v_cmp_ne_u32 vcc, 0, v4\ns_cbranch_vccz L_flok")
    a(f"s_sleep {cfg.rsleep}")
    spin_check("L_fl", 6)
    a.label("L_flok")
    stamp("w0_fl")
    def pv_prep():
        a(f"s_and_b32 s{sK0}, s{sW}, 3")
        a(f"v_lshrrev_b32 v4, 2, v{vI}\nv_lshlrev_b32 v4, 1, v4\nv_lshl_add_u32 v4, v{vS}, 3, v4")
        a(f"v_bfe_u32 v5, v{vI}, 1, 1\nv_lshl_add_u32 v5, s{sK0}, 4, v5")
        a(f"v_and_b32 v6, 15, v4\nv_xor_b32 v5, v5, v6\nv_lshlrev_b32 v5, 4, v5\nv_lshl_add_u32 v4, v4, 10, v5")
        a(f"v_and_b32 v5, 1, v{vI}\nv_lshl_add_u32 v4, v5, 3, v4")
        for t in range(8):
            for aa in range(2):
                a(f"v_xor_b32 v{16+2*t+aa}, {(((2*t)|aa)<<4) | (aa<<10)}, v4")
        a(f"v_lshlrev_b32 v8, 4, v{vI}\nv_add_u32 v8, {L_MX}, v8\nv_lshl_add_u32 v9, v{vS}, 2, v8")
        a(f"v_mul_u32_u24 v10, 80, v{vI}\nv_lshl_add_u32 v10, v{vS}, 4, v10\nv_add_u32 v10, {L_LS}, v10")
        if cfg.fullline:
            a(f"v_and_b32 v4, 7, v{vI}\nv_lshlrev_b32 v4, 17, v4\nv_lshl_add_u32 v4, v{vS}, 4, v4\nv_lshrrev_b32 v5, 3, v{vI}\nv_lshl_add_u32 v4, v5, 6, v4\nv_lshl_add_u32 v11, s{sK0}, 8, v4")
        else:
            a(f"v_lshlrev_b32 v4, 17, v{vI}\nv_lshl_add_u32 v4, v{vS}, 4, v4\nv_lshl_add_u32 v11, s{sK0}, 8, v4")
        a(f"s_lshr_b32 s{sT0}, s2, 7\ns_lshl_b32 s{sT2}, s{sT0}, 21\ns_and_b32 s{sT1}, s2, 127\ns_lshl_b32 s{sT3}, s{sT1}, 10\ns_add_u32 s{sT2}, s{sT2}, s{sT3}\ns_add_u32 s{sM}, s{sT2}, {WS_O}\ns_add_u32 s{sM+1}, s{sM}, {8<<17}")
        a(f"s_lshl_b32 s{sT1}, s{sT1}, 1\ns_add_u32 s{sT0}, s{sT0}, s{sT1}\ns_lshl_b32 s{sT0}, s{sT0}, 2\ns_add_u32 s{sT0}, s{sT0}, s{sK0}\ns_lshl_b32 s{sT0}, s{sT0}, 8\ns_add_u32 s{sM+2}, s{sT0}, {WS_REC}")
        a(f"s_mov_b32 s{sM+3}, 0x800080")
    if cfg.stamps: a(f"s_mov_b32 s{sDG}, s{sCNT}")
    a("s_branch L_pvp")

    a.label("L_not0")
    late_consts()
    a(f"v_lshlrev_b32 v7, 4, v{vL}")
    a("s_waitcnt lgkmcnt(0)")
    base(S_X, P16)
    rest_srds()
    if cfg.stamps: a(f"s_mov_b32 s{sDG}, 0")
    a(f"s_cmp_lt_u32 s{sW}, 4\ns_cbranch_scc1 L_s03")
    a(f"s_cmp_lg_u32 s{sW}, 5\ns_cbranch_scc1 L_not1")
    if cfg.prio: a("s_setprio 3")
    a("v_mov_b32 v8, -1\nv_mov_b32 v9, -1\nv_mov_b32 v10, -1\nv_mov_b32 v11, -1")
    qa_pub_addr(12)
    a(f"buffer_store_dwordx2 {d(8)}, v12, {srd(S_WS)}, s{sK3} offen sc1")
    a(f"s_lshl_b32 s{sT0}, s{sB45}, 6\ns_add_u32 s{sT0}, s{sT0}, s{sFS}\ns_lshl_b32 s{sT0}, s{sT0}, 10\ns_add_u32 s{sT1}, s{sT0}, {WS_H4}")
    a(f"buffer_store_dwordx4 {q(8)}, v7, {srd(S_WS)}, s{sT1} offen sc1")
    a(f"s_add_u32 s{sT1}, s{sT0}, {WS_H5}")
    a(f"buffer_store_dwordx4 {q(8)}, v7, {srd(S_WS)}, s{sT1} offen sc1")
    if not cfg.flag_first: a("s_barrier")
    make_tag()
    a(f"v_mov_b32 v14, s{sTAG}\nv_mov_b32 v15, 0\nv_mov_b32 v16, {L_SIG}")
    a(f"s_lshl_b32 s{sT0}, s2, 2\ns_add_u32 s{sT0}, s{sT0}, {WS_FLAGS}")
    a("s_waitcnt vmcnt(0)")
    stamp("w1_rst")
    a("ds_write_b32 v16, v14")
    a("s_mov_b64 exec, 1")
    a(f"buffer_store_dword v14, v15, {srd(S_WS)}, s{sT0} offen sc1")
    a("s_mov_b64 exec, -1\ns_waitcnt lgkmcnt(0)")
    if cfg.flag_first: a("s_barrier")
    a("s_branch L_not1b")
    a.label("L_not1")
    a("s_barrier")
    make_tag()
    a.label("L_not1b")

    a.label("L_pvp")
    if cfg.prio: a("s_setprio 2")
    pv_prep()
    a(f"s_bfe_u32 s{sT0}, s2, 0x20005\ns_lshl_b32 s{sT0}, s{sT0}, 15\ns_lshr_b32 s{sT2}, s2, 7\ns_lshl_b32 s{sT2}, s{sT2}, 14\ns_add_u32 s{sT0}, s{sT0}, s{sT2}")
    a(f"s_lshl_b32 s{sT2}, s{sK0}, 12\ns_add_u32 s{sT0}, s{sT0}, s{sT2}\ns_add_u32 s{sK2}, s{sT0}, {WS_H2}\ns_add_u32 s{sT2}, s{sT2}, {L_QA}")
    a(f"v_add_u32 v6, s{sT2}, v7\ns_mov_b32 s{sDG+1}, 0")
    def pf_one(n):
        if n < 2:
            a(f"s_lshl_b32 s{sT0}, s{sB45}, 20\ns_lshl_b32 s{sT1}, s{sFS}, 7\ns_add_u32 s{sT0}, s{sT0}, s{sT1}\ns_add_u32 s{sT0}, s{sT0}, {n<<19}\nv_lshlrev_b32 v5, 13, v{vL}")
            a(f"buffer_load_dword v0, v5, {srd(S_WUV)}, s{sT0} offen{cfg.ntpf}")
        elif n < 4:
            a(f"s_lshl_b32 s{sT0}, s{sFS}, 16\ns_lshl_b32 s{sT1}, s{sB45}, 14\ns_add_u32 s{sT0}, s{sT0}, s{sT1}\ns_add_u32 s{sT0}, s{sT0}, {(n-2)<<13}\nv_lshlrev_b32 v5, 7, v{vL}")
            a(f"buffer_load_dword v0, v5, {srd(S_WO)}, s{sT0} offen{cfg.ntpf}")
        elif n < 6:
            a(f"v_mul_u32_u24 v5, 3584, v{vL}\ns_mul_i32 s{sT0}, s{sJ}, {64*3584}\ns_lshl_b32 s{sT1}, s{sH}, 7\ns_add_u32 s{sT0}, s{sT0}, s{sT1}")
            a(f"buffer_load_dword v0, v5, {srd(S_WGU)}, s{sT0} offen{cfg.ntpf}")
        else:
            a(f"s_lshl_b32 s{sT1}, s{sH}, 16\ns_lshl_b32 s{sT0}, s{sJ}, 13\ns_add_u32 s{sT0}, s{sT0}, s{sT1}\nv_lshlrev_b32 v5, 7, v{vL}")
            a(f"buffer_load_dword v0, v5, {srd(S_WD)}, s{sT0} offen{cfg.ntpf}")
    def pf_range(lst):
        if not lst: return
        l = a.newlabel("L_pf")
        for cq in range(4):
            mine = [n for n in lst if (n & 3) == cq]
            if not mine: continue
            a(f"s_cmp_lg_u32 s{sK0}, {cq}\ns_cbranch_scc1 {l}_{cq}")
            for n in mine: pf_one(n)
            a.label(f"{l}_{cq}")
    def qa_loads():
        for r in range(4):
            a(f"buffer_load_dwordx4 {q(192+4*r)}, v7, {srd(S_WS)}, s{sK2} offen offset:{1024*r} sc1")
    a("s_barrier")
    stamp("b2")
    qa_loads()
    if cfg.pf_b3:
        a("s_barrier")
    def qa_check(extra):
        for r in range(4):
            rr = 192+4*r
            a(f"s_waitcnt vmcnt({3-r+extra})")
            a(f"ds_write_b128 v6, {q(rr)} offset:{1024*r}")
            if r == 0: a(f"v_max3_u32 v4, v{rr}, v{rr+1}, v{rr+2}\nv_max_u32 v4, v4, v{rr+3}")
            else: a(f"v_max3_u32 v4, v4, v{rr}, v{rr+1}\nv_max3_u32 v4, v4, v{rr+2}, v{rr+3}")
        a("v_cmp_eq_u32 vcc, -1, v4")
    if cfg.pf_b3:
        for cq in range(4):
            mine = [n for n in cfg.pf_b3 if (n & 3) == cq]
            a(f"s_cmp_lg_u32 s{sK0}, {cq}\ns_cbranch_scc1 L_qa{cq}")
            for n in mine: pf_one(n)
            qa_check(len(mine))
            a("s_branch L_qaj")
            a.label(f"L_qa{cq}")
    a.label("L_qachk")
    qa_check(0)
    a.label("L_qaj")
    a("s_cbranch_vccz L_qaok")
    a(f"s_add_u32 s{sDG+1}, s{sDG+1}, 1\ns_cmp_ge_u32 s{sDG+1}, {SPIN}\ns_cbranch_scc1 L_qafail")
    a(f"s_sleep {cfg.rsleep}\ns_waitcnt lgkmcnt(0)")
    qa_loads()
    a("s_branch L_qachk")
    a.label("L_qafail")
    fail(2)
    a.label("L_qaok")
    if cfg.stamps: a(f"s_lshl_b32 s{sT0}, s{sDG+1}, 16\ns_add_u32 s{sDG}, s{sDG}, s{sT0}")
    a("s_waitcnt lgkmcnt(0)")
    def wuv_loads(lo, hi):
        if lo >= hi: return
        a(f"v_lshrrev_b32 v4, 3, v{vI}\nv_lshlrev_b32 v4, 3, v4\nv_add_u32 v4, v4, v{vS}\nv_lshlrev_b32 v4, 15, v4\nv_and_b32 v5, 7, v{vI}\nv_lshl_add_u32 v6, v5, 4, v4")
        a(f"s_lshl_b32 s{sT0}, s{sK0}, 20\ns_lshl_b32 s{sT1}, s{sFS}, 7\ns_add_u32 s{sT0}, s{sT0}, s{sT1}")
        for n in range(lo, hi):
            gg, r = n >> 3, n & 7
            a(f"s_add_u32 s{sT1}, s{sT0}, {(64*gg+16*(r>>2)+(r&3))*8192}")
            a(f"buffer_load_dwordx4 {q(192+4*n)}, v6, {srd(S_WUV)}, s{sT1} offen{nt2}")
    a("s_barrier")
    stamp("b4")
    pf_range(cfg.pf_b4)
    if cfg.prio: a("s_setprio 0")
    def tr_all(tgs=(0, 1)):
        for tg in tgs:
            for half in range(2):
                for kk in range(2*half, 2*half+2):
                    for t in range(4*tg, 4*tg+4):
                        for aa in range(2):
                            a(f"ds_read_b64_tr_b16 {d(64+32*kk+4*t+2*aa)}, v{16+2*t+aa} offset:{(kk&1)*32768}")
                if half == 0:
                    for k in range(8*tg, 8*tg+8): a(f"v_add_u32 v{16+k}, 0x10000, v{16+k}")
    if cfg.wuv_weave and cfg.wuv1:
        wl = capture(lambda: wuv_loads(0, cfg.wuv1)); tl = capture(tr_all)
        k0 = len(wl) - 2*cfg.wuv1
        a.lines.extend(wl[:k0]); wl = wl[k0:]
        per = max(1, len(tl) // cfg.wuv1)
        while tl or wl:
            a.lines.extend(wl[:2]); wl = wl[2:]
            a.lines.extend(tl[:per]); tl = tl[per:]
    else:
        if cfg.trsleep: a(f"s_sleep {cfg.trsleep}")
        if cfg.tr_late:
            tr_all((0,))
            for k in range(8): a(f"v_mov_b32 v{240+k}, v{24+k}\nv_add_u32 v{248+k}, 0x10000, v{24+k}")
        else: tr_all()
    pf_range(cfg.pf_tr)
    if not cfg.wuv_weave: wuv_loads(0, cfg.wuv1)
    a(f"v_add_u32 v6, {L_PT}, v7\nv_mov_b32 v15, s{sTAG}")
    stamp("tr")
    if cfg.prio: a("s_setprio 1")
    a("s_barrier")
    stamp("b6")
    a(f"ds_read_b128 {q(48)}, v8")
    for kk in range(4): a(f"ds_read_b128 {q(16+4*kk)}, v6 offset:{kk*1024}")
    a(f"ds_read_b128 {q(52)}, v10\nds_read_b32 v56, v9")
    a("s_waitcnt lgkmcnt(6)")
    a("v_max3_i32 v12, v48, v49, v50\nv_max_i32 v12, v12, v51")
    def pscale(kk):
        a(f"v_sub_u32 v4, v12, v{48+kk}\nv_min_u32 v4, 255, v4\nv_mul_u32_u24 v4, s{sM+3}, v4")
        a(f"s_waitcnt lgkmcnt({5-kk})")
        for k in range(4): a(f"v_pk_sub_u16 v{16+4*kk+k}, v{16+4*kk+k}, v4 clamp")
    def ocvt(tp):
        for u in range(2):
            r = 32+4*(2*tp+u)
            a(f"v_cvt_pk_bf16_f32 v{64+4*tp+2*u}, v{r}, v{r+1}\nv_cvt_pk_bf16_f32 v{65+4*tp+2*u}, v{r+2}, v{r+3}")
    def ostore(hf):
        A, B, o = 64+8*hf, 68+8*hf, 80
        for k in range(4): a(f"v_mov_b32 v{o+k}, v{A+k}")
        for k in range(4): a(f"v_mov_b32_dpp v{A+k}, v{B+k} row_ror:8 row_mask:0xf bank_mask:0xc")
        a(f"buffer_store_dwordx4 {q(A)}, v11, {srd(S_WS)}, s{sM} offen offset:{128*hf} sc1")
        for k in range(4): a(f"v_mov_b32_dpp v{B+k}, v{o+k} row_ror:8 row_mask:0xf bank_mask:0x3")
        a(f"buffer_store_dwordx4 {q(B)}, v11, {srd(S_WS)}, s{sM+1} offen offset:{128*hf} sc1")
    def pvm(tg, kk): return capture(lambda: [mfma(32+4*t, 64+32*kk+4*t, 16+4*kk, "0" if kk == 0 else 32+4*t) for t in range(4*tg, 4*tg+4)])
    def lcalc():
        a("s_waitcnt lgkmcnt(0)")
        a(f"v_pk_add_f32 {d(52)}, {d(52)}, {d(54)}\nv_sub_u32 v5, v56, v12\nv_cvt_f32_i32 v12, v12\nv_add_f32 v13, v52, v53\nv_ldexp_f32 v13, v13, v5")
    pscale(0)
    stamp("pv0")
    if cfg.tr_late:
        assert cfg.wuv1 <= 12
        a("s_waitcnt lgkmcnt(0)")
        late = [f"    ds_read_b64_tr_b16 {d(64+32*kk+4*t+2*aa)}, v{(240 if kk < 2 else 248)+2*(t-4)+aa} offset:{(kk&1)*32768}" for kk in range(4) for t in range(4, 8) for aa in range(2)]
        for kk in range(4):
            f = [l for l in capture((lambda: pscale(kk+1)) if kk < 3 else lcalc) if "s_waitcnt" not in l]
            m = []
            for i in range(8):
                m.append(late.pop(0))
                if f: m.append(f.pop(0))
            weave(pvm(0, kk), m + f, per=4)
    else:
        for kk in range(4):
            weave(pvm(0, kk), capture((lambda: pscale(kk+1)) if kk < 3 else lcalc))
    stamp("pv1")
    fill = capture(lambda: (swapred("v_add_f32", (13,), (5,), 16), swapred("v_add_f32", (13,), (14,), 32), ocvt(0), ocvt(1), ostore(0)))
    if cfg.tr_late:
        g2 = []
        for kk in range(4):
            m = pvm(1, kk); m[0] = f"    s_waitcnt lgkmcnt({min(15, 24-8*kk)})\n" + m[0]; g2 += m
        n0 = len(a.lines); weave(g2, fill)
        a.lines[n0:] = [x for l in a.lines[n0:] for x in l.split("\n")]
    else:
        weave(pvm(1, 0) + pvm(1, 1) + pvm(1, 2) + pvm(1, 3), fill)
    stamp("pv2")
    ocvt(2); ocvt(3); ostore(1)
    stamp("ost")
    if cfg.wo0 < 16: a("s_barrier")
    a("v_bitop3_b32 v4, v64, v65, v66 bitop3:0x96\nv_bitop3_b32 v5, v68, v69, v70 bitop3:0x96")
    a("v_bitop3_b32 v4, v4, v67, v72 bitop3:0x96\nv_bitop3_b32 v5, v5, v71, v76 bitop3:0x96")
    a("v_bitop3_b32 v4, v4, v73, v74 bitop3:0x96\nv_bitop3_b32 v5, v5, v77, v78 bitop3:0x96")
    a("v_xor_b32 v4, v4, v75\nv_xor_b32 v5, v5, v79")
    dpp("v_xor_b32", 14, 4, 4, "row_ror:8")
    dpp("v_xor_b32", 14, 5, 5, "row_ror:8", "0xc")
    swapred("v_xor_b32", (14,), (5,), 16)
    swapred("v_xor_b32", (14,), (5,), 32)
    a("v_bitop3_b32 v14, v14, v12, v13 bitop3:0x96")
    a("s_mov_b64 exec, 0xffff")
    a(f"buffer_store_dwordx4 {q(12)}, v7, {srd(S_WS)}, s{sM+2} offen sc1")
    a("s_mov_b64 exec, -1")
    a("s_branch L_p45b")

    a.label("L_s03")
    for r in range(16): a(f"v_xor_b32 v{8+r}, {r<<4}, v7")
    a(f"s_lshl_b32 s{sT1}, s{sW}, 15")
    if cfg.ilv == 2:
        a(f"s_bfe_u32 s{sT0}, s2, 0x20005\ns_lshl_b32 s{sT0}, s{sT0}, 22\ns_and_b32 s{sT3}, s2, 31\ns_lshl_b32 s{sT3}, s{sT3}, 12\ns_add_u32 s{sT0}, s{sT0}, s{sT3}\ns_lshl_b32 s{sT3}, s{sW}, 17\ns_add_u32 s{sT0}, s{sT0}, s{sT3}")
        gstep = 4*131072
    elif cfg.ilv == 3:
        a(f"s_bfe_u32 s{sT0}, s2, 0x20005\ns_lshl_b32 s{sT0}, s{sT0}, 22\ns_and_b32 s{sT3}, s2, 31\ns_lshl_b32 s{sT3}, s{sT3}, 14\ns_add_u32 s{sT0}, s{sT0}, s{sT3}\ns_lshl_b32 s{sT3}, s{sW}, 12\ns_add_u32 s{sT0}, s{sT0}, s{sT3}")
        gstep = 524288
    else:
        a(f"s_and_b32 s{sT0}, s2, 127\ns_lshl_b32 s{sT0}, s{sT0}, 17\ns_lshl_b32 s{sT3}, s{sW}, {12 if cfg.ilv else 15}\ns_add_u32 s{sT0}, s{sT0}, s{sT3}")
        gstep = 16384 if cfg.ilv else 4096
    a("s_barrier")
    stamp("b0")
    for r in range(32):
        if r % 4 == 0: a(f"s_add_u32 m0, s{sT1}, {r*1024}\ns_add_u32 s{sT2}, s{sT0}, {(r>>2)*gstep}")
        for (row, first) in ((cfg.pf_ld45, 0), (cfg.pf_ldF, 4)):
            if r == row:
                l = a.newlabel("L_pfl")
                a(f"s_mov_b32 s{sK0}, s{sT0}\ns_mov_b32 s{sK1}, s{sT1}")
                for w_ in range(4 if first == 0 else 3):
                    a(f"s_cmp_lg_u32 s{sW}, {w_}\ns_cbranch_scc1 {l}_{w_}")
                    pf_one(first + w_)
                    a.label(f"{l}_{w_}")
                a(f"s_mov_b32 s{sT0}, s{sK0}\ns_mov_b32 s{sT1}, s{sK1}")
        wn = cfg.wn1 if r < cfg.n1 else (cfg.wn if r < 16 else cfg.wn2)
        if r >= wn: a(f"s_waitcnt vmcnt({wn-1})")
        a(f"buffer_load_dwordx4 v{8+(r&15)}, {srd(S_CKV)}, s{sT2} offen offset:{1024*(r&3)}{nt} lds")
    stamp("ld_iss")
    a(f"s_waitcnt vmcnt({cfg.b2w})")
    a("s_barrier")
    if cfg.pf_b3: a("s_barrier")
    make_tag()
    for kk in range(4):
        a(f"v_add_u32 v4, {4*kk}, v{vS}\nv_xor_b32 v4, v4, v{vI}\nv_lshlrev_b32 v4, 4, v4\nv_lshl_add_u32 v4, v{vI}, 10, v4")
        a(f"v_add_u32 v{20+kk}, {L_QA}, v4")
        a(f"v_lshl_add_u32 v{16+kk}, s{sW}, 15, v4")
    a(f"v_lshlrev_b32 v24, 4, v{vI}\nv_lshl_add_u32 v24, s{sW}, 2, v24\nv_add_u32 v24, {L_MX}, v24")
    a(f"s_lshl_b32 s{sT0}, s{sW}, 10\ns_add_u32 s{sT0}, s{sT0}, {L_PT}")
    a(f"v_lshrrev_b32 v4, 1, v{vS}\nv_lshlrev_b32 v4, 8, v4\nv_lshl_add_u32 v4, v{vI}, 4, v4\nv_and_b32 v5, 1, v{vS}\nv_lshl_add_u32 v4, v5, 2, v4\nv_add_u32 v25, s{sT0}, v4")
    a(f"v_mul_u32_u24 v4, 80, v{vI}\nv_lshl_add_u32 v4, v{vS}, 2, v4\nv_lshl_add_u32 v4, s{sW}, 4, v4\nv_add_u32 v26, {L_LS}, v4")
    a(f"s_mov_b32 s{sC}, {f2u(math.log2(math.e) * 128 ** -0.5)}")
    a("s_waitcnt vmcnt(0)")
    stamp("ckv")
    for ks in range(16):
        for a2 in range(2): a(f"ds_read_b128 {q(64+8*ks+4*a2)}, v{16+(ks&3)} offset:{(ks>>2)*256+16384*a2}")
    a("s_barrier")
    if cfg.prio: a("s_setprio 2")
    for ks in range(16): a(f"ds_read_b128 {q(192+4*ks)}, v{20+(ks&3)} offset:{(ks>>2)*256}")
    for ks in range(16):
        a(f"s_waitcnt lgkmcnt({15-ks})")
        for a2 in range(2): mfma(8+4*a2, 64+8*ks+4*a2, 192+4*ks, "0" if ks == 0 else 8+4*a2)
    stamp("smf")
    a("v_max3_f32 v28, v8, v9, v10\nv_max3_f32 v29, v11, v12, v13\nv_max3_f32 v28, v28, v14, v15\nv_max_f32 v28, v28, v29")
    swapred("v_max_f32", (28,), (29,), 16)
    swapred("v_max_f32", (28,), (29,), 32)
    a(f"v_mul_f32 v28, s{sC}, v28\nv_ceil_f32 v28, v28")
    for k in range(8): a(f"v_fma_f32 v{8+k}, v{8+k}, s{sC}, -v28")
    a("v_cvt_i32_f32 v28, v28")
    for k in range(8): a(f"v_exp_f32 v{8+k}, v{8+k}")
    a("ds_write_b32 v24, v28")
    for a2 in range(2):
        a(f"v_cvt_pk_bf16_f32 v{30+2*a2}, v{8+4*a2}, v{10+4*a2}\nv_cvt_pk_bf16_f32 v{31+2*a2}, v{9+4*a2}, v{11+4*a2}")
        a(f"ds_write2_b32 v25, v{30+2*a2}, v{31+2*a2} offset0:{128*a2} offset1:{128*a2+2}")
    a(f"v_pk_add_f32 {d(8)}, {d(8)}, {d(10)}\nv_pk_add_f32 {d(12)}, {d(12)}, {d(14)}\nv_pk_add_f32 {d(8)}, {d(8)}, {d(12)}\nv_add_f32 v8, v8, v9")
    a("ds_write_b32 v26, v8")
    a("s_waitcnt lgkmcnt(0)")
    a("s_barrier")
    if cfg.prio: a("s_setprio 0")
    a(f"v_and_b32 v4, 7, v{vI}\nv_mul_u32_u24 v4, 272, v4\nv_lshrrev_b32 v5, 3, v{vI}\nv_lshl_add_u32 v4, v5, 7, v4\nv_lshl_add_u32 v4, v{vS}, 5, v4\nv_add_u32 v16, {L_CP}, v4")
    a(f"s_lshl_b32 s{sK3}, s{sB45}, 6\ns_add_u32 s{sK3}, s{sK3}, s{sFS}\ns_lshl_b32 s{sK3}, s{sK3}, 10\ns_lshl_b32 s{sT1}, s{sW}, 8\ns_add_u32 s{sK3}, s{sK3}, s{sT1}\ns_add_u32 s{sK2}, s{sK3}, {WS_H4}\ns_add_u32 s{sK3}, s{sK3}, {WS_H5}")
    a(f"s_lshl_b32 s{sK0}, s{sFS}, 15\ns_add_u32 s{sK0}, s{sK0}, s{sT1}\ns_add_u32 s{sK1}, s{sK0}, 4096")
    a(f"v_lshlrev_b32 v17, 10, v{vS}\nv_lshl_add_u32 v17, v{vI}, 4, v17\nv_lshlrev_b32 v18, 12, v{vS}\nv_lshl_add_u32 v18, v{vI}, 4, v18")
    a(f"s_lshl_b32 s{sM}, s{sB45}, 16\ns_add_u32 s{sM}, s{sM}, s{sT1}\ns_add_u32 s{sM}, s{sM}, {WS_H4}\ns_lshl_b32 s{sM+1}, s{sB45}, 10\ns_add_u32 s{sM+1}, s{sM+1}, s{sT1}")
    a(f"s_add_u32 s{sT0}, s{sT1}, {L_HS}\nv_and_b32 v4, 1, v{vS}\nv_lshlrev_b32 v4, 3, v4\nv_lshl_add_u32 v4, v{vI}, 4, v4\nv_add_u32 v19, s{sT0}, v4")
    a(f"v_and_b32 v4, 1, v{vI}\nv_lshlrev_b32 v4, 4, v4\nv_mov_b32 v5, 0x3f80\nv_lshlrev_b32 v4, v4, v5\nv_bfe_u32 v5, v{vI}, 1, 2")
    for k in range(4): a(f"v_cmp_eq_u32 vcc, {k}, v5\nv_cndmask_b32 v{28+k}, 0, v4, vcc")
    a(f"s_mov_b32 s{sDG+1}, 0")
    a(f"buffer_load_dwordx4 {q(44)}, v18, {srd(S_X)}, s{sM+1} offen")
    a(f"v_lshlrev_b32 v6, 13, v{vS}\nv_lshl_add_u32 v6, v{vI}, 4, v6")
    a(f"s_lshl_b32 s{sT0}, s{sFS}, 16\ns_lshl_b32 s{sT1}, s{sW}, 8\ns_add_u32 s{sT0}, s{sT0}, s{sT1}")
    def wo_loads(lo, hi):
        for n in range(lo, hi):
            ks, r4, r = n >> 3, (n >> 2) & 1, n & 3
            if r == 0 or n == lo: a(f"s_add_u32 s{sT1}, s{sT0}, {(32*ks+4*r4)*1024}")
            a(f"buffer_load_dwordx4 {q(192+4*n)}, v6, {srd(S_WO)}, s{sT1} offen offset:{1024*r}{nt2}")
    wo_loads(0, cfg.wo0)
    if cfg.wo0 < 16: a("s_barrier")
    wo_loads(cfg.wo0, max(cfg.wo0, cfg.wo1))
    if cfg.wo1 < 16:
        a("s_barrier")
        wo_loads(max(cfg.wo0, cfg.wo1), 16)
    npw = 0
    if cfg.pf_wo:
        a(f"s_cmp_ge_u32 s{sW}, 2\ns_cbranch_scc1 L_pfw")
        pf_one(4)
        a("s_branch L_pfw2")
        a.label("L_pfw")
        a(f"s_lshl_b32 s{sT1}, s{sH}, 16\ns_lshl_b32 s{sT0}, s{sJ}, 13\ns_add_u32 s{sT0}, s{sT0}, s{sT1}")
        a(f"v_lshlrev_b32 v5, 7, v{vL}\nv_lshl_add_u32 v5, s{sW}, 30, v5\nv_xor_b32 v5, 0x80000000, v5")
        a(f"buffer_load_dword v0, v5, {srd(S_WD)}, s{sT0} offen{cfg.ntpf}")
        a.label("L_pfw2")
        npw = 1
    stamp("woiss")
    a(f"s_waitcnt vmcnt({8+npw})")
    transpose(192, 128)
    a(f"s_waitcnt vmcnt({npw})")
    transpose(224, 192)
    stamp("wo")
    a("s_barrier")
    a(f"ds_read_b128 {q(8)}, v16\nds_read_b128 {q(12)}, v16 offset:16")
    for hf in range(2):
        a(f"s_waitcnt lgkmcnt({1-hf})")
        for k in range(4): dpp("v_add_f32", 8+4*hf+k, 8+4*hf+k, 8+4*hf+k, Q1)
    for c in (Q2, HM):
        for k in range(8): dpp("v_add_f32", 8+k, 8+k, 8+k, c)
    stamp("b10")
    for k in range(4): a(f"v_cvt_pk_bf16_f32 v{20+k}, v{8+2*k}, v{9+2*k}")
    for k in range(4): a(f"v_mov_b32_dpp v{24+k}, v{20+k} row_ror:8 row_mask:0xf bank_mask:0xf")
    for ks in range(2):
        for i in range(8):
            mfma(64+4*i, 20+4*ks, (128 if ks == 0 else 192)+4*i, "0" if ks == 0 else 64+4*i)
    a("s_mov_b64 exec, 0xffff")
    for k in range(4): a(f"v_cvt_pk_bf16_f32 v{8+k}, v{64+8*k}, v{68+8*k}")
    a(f"buffer_store_dwordx4 {q(8)}, v7, {srd(S_WS)}, s{sK2} offen sc1")
    a("s_mov_b64 exec, -1")
    stamp("h4pub")
    a(f"s_cmp_ge_u32 s{sH}, 28\ns_cbranch_scc1 L_fin")
    a("s_branch L_f03")

    a.label("L_p45b")
    pf_range(cfg.pf_ost)
    wuv_loads(cfg.wuv1, 16)
    npo = 0
    a(f"v_and_b32 v4, 7, v{vI}\nv_lshl_add_u32 v4, v4, 2, v{vS}\nv_lshlrev_b32 v17, 11, v4")
    a(f"s_lshl_b32 s{sK2}, s{sB45}, 16\ns_lshr_b32 s{sT1}, s{sH}, 4\ns_lshl_b32 s{sT1}, s{sT1}, 10\ns_add_u32 s{sK2}, s{sK2}, s{sT1}\ns_lshl_b32 s{sT1}, s{sK0}, 8\ns_add_u32 s{sK2}, s{sK2}, s{sT1}")
    a(f"s_and_b32 s{sT1}, s{sH}, 15\ns_lshl_b32 s{sT1}, s{sT1}, 4\ns_add_u32 s{sK2}, s{sK2}, s{sT1}\ns_add_u32 s{sK2}, s{sK2}, {WS_REC}")
    a(f"v_lshlrev_b32 v16, 10, v{vS}\nv_lshl_add_u32 v16, v{vI}, 4, v16")
    a(f"s_lshl_b32 s{sK1}, s{sH}, 2\ns_add_u32 s{sK1}, s{sK1}, s{sB45}\ns_lshl_b32 s{sK1}, s{sK1}, 15\ns_lshl_b32 s{sT1}, s{sK0}, 8\ns_add_u32 s{sK1}, s{sK1}, s{sT1}\ns_add_u32 s{sK1}, s{sK1}, {WS_O}")
    a(f"v_and_b32 v4, 1, v{vI}\nv_lshlrev_b32 v4, 4, v4\nv_mov_b32 v5, 0xffff\nv_lshlrev_b32 v4, v4, v5\nv_bfe_u32 v5, v{vI}, 1, 2")
    for k in range(4): a(f"v_cmp_eq_u32 vcc, {k}, v5\nv_cndmask_b32 v{12+k}, 0, v4, vcc")
    a(f"s_lshl_b32 s{sT0}, s{sK0}, 8\ns_add_u32 s{sT0}, s{sT0}, {L_CS}")
    a(f"v_and_b32 v4, 1, v{vS}\nv_lshlrev_b32 v4, 3, v4\nv_lshl_add_u32 v4, v{vI}, 4, v4\nv_add_u32 v18, s{sT0}, v4")
    a(f"v_and_b32 v4, 4, v{vI}\nv_add_u32 v4, v4, v{vS}\nv_lshl_add_u32 v19, v4, 4, s{sT0}")
    a(f"s_mul_i32 s{sT0}, s{sK0}, 544\ns_add_u32 s{sT0}, s{sT0}, {L_CP}")
    a(f"v_lshrrev_b32 v4, 3, v{vI}\nv_mul_u32_u24 v4, 272, v4\nv_and_b32 v5, 7, v{vI}\nv_lshl_add_u32 v4, v5, 5, v4\nv_lshrrev_b32 v5, 1, v{vS}\nv_lshl_add_u32 v4, v5, 4, v4\nv_add_u32 v20, s{sT0}, v4")
    a(f"s_mov_b32 s{sM}, 0x00ff00ff\ns_mov_b32 s{sM+1}, 0x00ff00ff\ns_mov_b32 s{sM+2}, 0\ns_mov_b32 s{sM+3}, -1\ns_mov_b32 s{sCNT}, 0")
    def rec_load(): a(f"buffer_load_dwordx4 {q(96)}, v17, {srd(S_WS)}, s{sK2} offen sc1")
    stamp("wuviss")
    if cfg.wuv1 == 16:
        if cfg.recsleep: a(f"s_sleep {cfg.recsleep}")
        rec_load()
        a(f"s_waitcnt vmcnt({6+len([n for n in cfg.pf_ost if (n & 3) == 0])})")
        assert not cfg.pf_ost
        transpose(192, 128)
        transpose(224, 192)
    else:
        a(f"s_waitcnt vmcnt({min(8, 16-cfg.wuv1)+npo})")
        stamp("wuv0")
        transpose(192, 128)
        rec_load()
        a(f"s_waitcnt vmcnt({1+npo})")
        transpose(224, 192)
    stamp("wuv")
    def pay_load(t):
        a(f"s_add_u32 s{sT1}, s{sK1}, {t*4096}")
        a(f"buffer_load_dwordx4 {q(64+4*t)}, v16, {srd(S_WS)}, s{sT1} offen sc1")
    def pay_some(mask):
        l = a.newlabel("L_ps")
        for t in range(8):
            a(f"s_bitcmp1_b32 s{mask}, {t}\ns_cbranch_scc0 {l}_{t}")
            pay_load(t)
            a.label(f"{l}_{t}")
    sLD = sM+4
    a(f"s_mov_b32 s{sDG+1}, 0\ns_mov_b32 s{sK3}, 0\ns_mov_b32 s{sLD}, 0")
    a.label("L_recpoll")
    a("s_waitcnt vmcnt(0)")
    a(f"v_cmp_ne_u32 vcc, s{sTAG}, v99\ns_cbranch_vccz L_recok")
    if cfg.sel3:
        a(f"s_or_b32 s{sT0}, vcc_lo, vcc_hi\ns_lshr_b32 s{sT2}, s{sT0}, 16\ns_or_b32 s{sT0}, s{sT0}, s{sT2}\ns_or_b32 s{sT0}, s{sT0}, s{sLD}\ns_andn2_b32 s{sT0}, 0xff, s{sT0}\ns_or_b32 s{sLD}, s{sLD}, s{sT0}")
        pay_some(sT0)
    if cfg.wo1 < 16 and cfg.b9_early:
        a(f"s_cmp_lg_u32 s{sK3}, 0\ns_cbranch_scc1 L_b9a\ns_mov_b32 s{sK3}, 1\ns_barrier")
        a.label("L_b9a")
    a(f"s_sleep {cfg.rsleep}")
    rec_load()
    a(f"s_add_u32 s{sDG+1}, s{sDG+1}, 1\ns_cmp_lt_u32 s{sDG+1}, {SPIN}\ns_cbranch_scc1 L_recpoll")
    fail(7)
    a("s_waitcnt vmcnt(0)")
    a.label("L_recok")
    stamp("rec")
    if cfg.sel3:
        a(f"s_cmp_eq_u32 s{sLD}, 0\ns_cbranch_scc1 L_payall")
        a(f"s_andn2_b32 s{sT0}, 0xff, s{sLD}")
        pay_some(sT0)
        a("s_branch L_payj")
        a.label("L_payall")
    for t in range(8): pay_load(t)
    a.label("L_payj")
    npf = 0
    if cfg.pf_rec:
        pf_range((4, 5, 6))
        a(f"s_cmp_lg_u32 s{sK0}, 3\ns_cbranch_scc1 L_pf7\nv_bfrev_b32 v5, 1\nbuffer_load_dword v0, v5, {srd(S_WD)}, 0 offen")
        a.label("L_pf7")
        npf = 1
    if cfg.wo1 < 16:
        a(f"s_cmp_lg_u32 s{sK3}, 0\ns_cbranch_scc1 L_nob9\ns_mov_b32 s{sK3}, 1\ns_barrier")
        a.label("L_nob9")
    stamp("h3iss")
    dpp("v_max_f32", 24, 96, 96, Q1)
    a(f"v_bitop3_b32 v26, v96, v97, v98 bitop3:0x96")
    dpp("v_max_f32", 24, 24, 24, Q2)
    a(f"v_cndmask_b32 v26, 0, v26, s[{sM}:{sM+1}]")
    dpp("v_max_f32", 24, 24, 24, HM)
    swapred("v_max_f32", (24,), (25,), 16)
    swapred("v_max_f32", (24,), (25,), 32)
    a("v_sub_f32 v24, v96, v24\nv_exp_f32 v24, v24\nv_mul_f32 v25, v24, v97")
    for c in (Q1, Q2, HM): dpp("v_add_f32", 25, 25, 25, c)
    swapred("v_add_f32", (25,), (27,), 16)
    swapred("v_add_f32", (25,), (27,), 32)
    a("v_rcp_f32 v25, v25\nv_mul_f32 v24, v24, v25\nv_cvt_pk_bf16_f32 v24, v24, v24")
    for t in range(8):
        for k in range(4): a(f"v_and_b32_dpp v{160+4*t+k}, v24, v{12+k} row_newbcast:{t} row_mask:0xf bank_mask:0xf")
    if cfg.sel3:
        a(f"s_cmp_eq_u32 s{sLD}, 0\ns_cbranch_scc1 L_payw\ns_waitcnt vmcnt({npf})")
        a.label("L_payw")
    for t in range(8):
        a(f"s_waitcnt vmcnt({7-t+npf})")
        mfma(8, 160+4*t, 64+4*t, "0" if t == 0 else 8)
        if t: a(f"v_bitop3_b32 v26, v26, v{60+4*t}, v{61+4*t} bitop3:0x96\nv_bitop3_b32 v26, v26, v{62+4*t}, v{63+4*t} bitop3:0x96")
    a(f"v_bitop3_b32 v26, v26, v92, v93 bitop3:0x96\nv_bitop3_b32 v26, v26, v94, v95 bitop3:0x96")
    stamp("comb")
    dpp("v_xor_b32", 26, 26, 26, Q1)
    a("v_cvt_pk_bf16_f32 v4, v8, v9\nv_cvt_pk_bf16_f32 v5, v10, v11")
    a(f"ds_write_b64 v18, {d(4)}")
    a(f"ds_read_b128 {q(100)}, v19\nds_read_b128 {q(104)}, v19 offset:128")
    if cfg.pf_comb: pf_range((4, 5, 6))
    for c in (Q2, HM, RM): dpp("v_xor_b32", 26, 26, 26, c)
    swapred("v_xor_b32", (26,), (27,), 16)
    swapred("v_xor_b32", (26,), (27,), 32)
    a("v_cmp_ne_u32 vcc, 0, v26")
    for gg in range(2):
        a(f"s_waitcnt lgkmcnt({1-gg})")
        for i in range(8):
            mfma(32+4*i, 100+4*gg, (128 if gg == 0 else 192)+4*i, "0" if gg == 0 else 32+4*i)
        if gg == 0:
            a("s_cbranch_vccz L_h3ok")
            a(f"s_add_u32 s{sCNT}, s{sCNT}, 1\ns_cmp_ge_u32 s{sCNT}, {SPIN}\ns_cbranch_scc1 L_h3fail")
            a(f"s_sleep {cfg.rsleep}\ns_waitcnt lgkmcnt(0)\ns_mov_b32 s{sLD}, 0")
            rec_load()
            a("s_branch L_recpoll")
            a.label("L_h3fail")
            fail(3)
            a.label("L_h3ok")
    for k in range(4): a(f"v_cndmask_b32 v{8+k}, v{32+4*k}, v{48+4*k}, s[{sM+2}:{sM+3}]")
    a("s_mov_b32 exec_lo, 0xff0000ff\ns_mov_b32 exec_hi, 0xff0000ff")
    a(f"ds_write_b128 v20, {q(8)}")
    a("s_mov_b64 exec, -1")
    a("s_waitcnt lgkmcnt(0)")
    a("s_barrier")
    if cfg.prio: a("s_setprio 0")
    a(f"v_and_b32 v4, 12, v{vI}\nv_add_u32 v4, v4, v{vS}\nv_mul_u32_u24 v4, {8*3584}, v4\nv_and_b32 v5, 3, v{vI}\nv_lshl_add_u32 v6, v5, 4, v4")
    a(f"s_lshr_b32 s{sT0}, s{sK0}, 1\ns_mul_i32 s{sT0}, s{sT0}, {256*3584}\ns_lshl_b32 s{sT1}, s{sFS}, 6\ns_add_u32 s{sT0}, s{sT0}, s{sT1}")
    a(f"s_cmp_ge_u32 s{sH}, 28\ns_cbranch_scc1 L_fin")
    for n in range(16):
        gg, r = n >> 3, n & 7
        if n == cfg.gu0: a("s_barrier")
        a(f"s_add_u32 s{sT1}, s{sT0}, {(128*gg+r)*3584}")
        a(f"buffer_load_dwordx4 {q(192+4*n)}, v6, {srd(S_WGU)}, s{sT1} offen{nt2}")
    stamp("guiss")

    a(f"s_lshr_b32 s{sT0}, s{sK0}, 1\ns_lshl_b32 s{sT1}, s{sT0}, 9\ns_add_u32 s{sT1}, s{sT1}, {L_HS}")
    a(f"v_and_b32 v4, 12, v{vI}\nv_add_u32 v4, v4, v{vS}\nv_lshl_add_u32 v21, v4, 4, s{sT1}")
    a(f"s_lshl_b32 s{sT0}, s{sT0}, 10\ns_and_b32 s{sT1}, s{sW}, 1\ns_lshl_b32 s{sT1}, s{sT1}, 7\ns_add_u32 s{sT0}, s{sT0}, s{sT1}\ns_add_u32 s{sT0}, s{sT0}, {L_GP}")
    a(f"v_and_b32 v4, 3, v{vI}\nv_lshlrev_b32 v4, 5, v4\nv_lshl_add_u32 v4, v{vS}, 8, v4\nv_add_u32 v22, s{sT0}, v4\nv_add_u32 v23, {L_CG-L_GP}, v22")
    for k in range(4): a(f"v_mov_b32 v{8+k}, 0x3f803f80")
    a("s_waitcnt vmcnt(8)")
    transpose(192, 128)
    for i in range(8): mfma(64+4*i, 8, 128+4*i, "0")
    a("s_waitcnt vmcnt(0)")
    transpose(224, 192)
    for i in range(8): mfma(64+4*i, 8, 192+4*i, 64+4*i)
    a("s_mov_b32 exec_lo, 0x00f0000f\ns_mov_b32 exec_hi, 0xf0000f00")
    for k in range(4): a(f"ds_write2_b32 v23, v{64+8*k}, v{68+8*k} offset0:{2*k} offset1:{2*k+1}")
    a("s_mov_b64 exec, -1\ns_waitcnt lgkmcnt(0)")
    stamp("gu")
    if cfg.prio: a("s_setprio 1")
    a("s_barrier")
    stamp("b12")
    a(f"ds_read_b128 {q(100)}, v21\nds_read_b128 {q(104)}, v21 offset:256")
    for gg in range(2):
        a(f"s_waitcnt lgkmcnt({1-gg})")
        for i in range(8):
            mfma(64+4*i, 100+4*gg, (128 if gg == 0 else 192)+4*i, "0" if gg == 0 else 64+4*i)
    a("s_mov_b32 exec_lo, 0x00f0000f\ns_mov_b32 exec_hi, 0xf0000f00")
    for k in range(4): a(f"ds_write2_b32 v22, v{64+8*k}, v{68+8*k} offset0:{2*k} offset1:{2*k+1}")
    a("s_waitcnt lgkmcnt(0)")
    a("s_barrier")
    a("s_branch L_fin")

    a.label("L_f03")
    if cfg.gu0 < 16: a("s_barrier")
    if cfg.rot4: a(f"s_lshr_b32 s{sM+3}, s{sH}, 3\ns_lshl_b32 s{sM+3}, s{sM+3}, 1\ns_lshr_b32 s{sT0}, s{sJ}, 2\ns_add_u32 s{sM+3}, s{sM+3}, s{sT0}\ns_lshl_b32 s{sM+3}, s{sM+3}, 13")
    else: a(f"s_mov_b32 s{sM+3}, 0")
    a(f"v_add_u32 v17, s{sM}, v17")
    def h4_load(t):
        a(f"s_add_u32 s{sT1}, s{sM+3}, {t*4096}\ns_and_b32 s{sT1}, s{sT1}, 0xffff")
        a(f"buffer_load_dwordx4 {q(64+4*t)}, v17, {srd(S_WS)}, s{sT1} offen sc1")
    def h4_loads():
        for t in range(16): h4_load(t)
    if cfg.prio: a("s_setprio 2")
    a("s_waitcnt vmcnt(0)")
    if cfg.h4sleep: a(f"s_sleep {cfg.h4sleep}")
    stamp("b11")
    h4_loads()
    def down_loads():
        for r4 in range(2):
            for r in range(4):
                a(f"buffer_load_dwordx4 {q(192+16*r4+4*r)}, v6, {srd(S_WD)}, s{sK0+r4} offen offset:{1024*r}{nt2}")
    a(f"v_lshlrev_b32 v21, 2, v{vL}")
    a(f"s_lshl_b32 s{sT0}, s{sW}, 6\ns_add_u32 s{sT0}, s{sT0}, {L_AS}")
    a(f"v_and_b32 v4, 31, v{vL}\nv_lshl_add_u32 v22, v4, 1, s{sT0}\nv_lshl_add_u32 v23, v{vS}, 4, s{sT0}")
    k1 = -2.0 * math.sqrt(2.0/math.pi) * math.log2(math.e)
    a(f"v_mov_b32 v48, {f2u(k1)}\ns_mov_b32 s{sM+2}, 0x3f803f80")
    stamp("h4iss")
    mfma(8, 28, 44, "0")
    for t in range(16):
        a(f"s_waitcnt vmcnt({15-t if t <= cfg.dn_at else 23-t})")
        if t == 0: stamp("h4first")
        mfma(8, 28, 64+4*t, 8)
        if t == cfg.dn_at: down_loads()
    a("s_branch L_h4k")
    a.label("L_h4")
    mfma(8, 28, 44, "0")
    for t in range(16): mfma(8, 28, 64+4*t, 8)
    a.label("L_h4k")
    a("s_nop 6")
    a(f"v_cvt_pk_bf16_f32 v4, v8, v9\nv_cvt_pk_bf16_f32 v5, v10, v11")
    a(f"v_cmp_u_f32 vcc, v8, v9\nv_cmp_u_f32 s[{sEX}:{sEX+1}], v10, v11")
    a(f"ds_write_b64 v19, {d(4)}")
    a(f"s_or_b64 vcc, vcc, s[{sEX}:{sEX+1}]\ns_cbranch_vccz L_h4ok")
    if cfg.sel4:
        sBD = sM+4
        a(f"s_mov_b32 s{sBD}, 0xffff")
        a.label("L_h4s")
        a(f"s_mov_b32 s{sBD+1}, 0")
        for t in range(16):
            r = 64+4*t
            a(f"s_bitcmp1_b32 s{sBD}, {t}\ns_cbranch_scc0 L_h4c{t}")
            a(f"v_max3_u32 v4, v{r}, v{r+1}, v{r+2}\nv_max_u32 v4, v4, v{r+3}\nv_cmp_eq_u32 vcc, -1, v4\ns_cbranch_vccz L_h4c{t}")
            a(f"s_bitset1_b32 s{sBD+1}, {t}")
            h4_load(t)
            a.label(f"L_h4c{t}")
        a(f"s_mov_b32 s{sBD}, s{sBD+1}\ns_cmp_eq_u32 s{sBD}, 0\ns_cbranch_scc1 L_h4d")
        a(f"s_waitcnt vmcnt(0)\ns_add_u32 s{sDG+1}, s{sDG+1}, 1\ns_cmp_lt_u32 s{sDG+1}, {SPIN}\ns_cbranch_scc1 L_h4s")
        fail(4)
        a.label("L_h4d")
        mfma(8, 28, 44, "0")
        for t in range(16): mfma(8, 28, 64+4*t, 8)
        a(f"v_cvt_pk_bf16_f32 v4, v8, v9\nv_cvt_pk_bf16_f32 v5, v10, v11")
        a(f"ds_write_b64 v19, {d(4)}")
    else:
        a(f"s_sleep {cfg.rsleep}")
        h4_loads()
        a("s_waitcnt vmcnt(0)")
        a(f"s_add_u32 s{sDG+1}, s{sDG+1}, 1\ns_cmp_lt_u32 s{sDG+1}, {SPIN}\ns_cbranch_scc1 L_h4")
        fail(4)
    a.label("L_h4ok")
    a("s_waitcnt lgkmcnt(0)")
    stamp("h4red")
    if cfg.stamps: a(f"s_mov_b32 s{sDG}, s{sDG+1}")
    a("s_barrier")
    if cfg.prio: a("s_setprio 0")
    a(f"ds_read_b128 {q(32)}, v7 offset:{L_HS}")
    for p in range(8): a(f"ds_read_b32 v{100+p}, v21 offset:{L_CG+256*p}")
    a(f"v_lshrrev_b32 v4, 3, v{vI}\nv_lshl_add_u32 v4, v{vS}, 1, v4\nv_lshlrev_b32 v4, 10, v4\nv_and_b32 v5, 7, v{vI}\nv_lshl_add_u32 v16, v5, 4, v4")
    a(f"s_lshl_b32 s{sK2}, s{sB45}, 16\ns_lshl_b32 s{sT1}, s{sFS}, 7\ns_add_u32 s{sK2}, s{sK2}, s{sT1}\ns_add_u32 s{sK2}, s{sK2}, {WS_H5}")
    a(f"s_and_b32 s{sT0}, s{sT1}, 0x3ff\ns_add_u32 s{sT0}, s{sT0}, {L_HS}\nv_lshl_add_u32 v19, v5, 4, s{sT0}")
    a(f"ds_read_b128 {q(44)}, v19")
    a(f"v_and_b32 v4, 1, v{vS}\nv_lshlrev_b32 v4, 3, v4\nv_lshl_add_u32 v18, v5, 4, v4")
    a(f"s_lshl_b32 s{sK1}, s{sB45}, 10\ns_add_u32 s{sK1}, s{sK1}, s{sT1}")
    a("s_waitcnt lgkmcnt(9)")
    a(f"v_dot2_f32_bf16 v40, v32, s{sM+2}, 0\nv_dot2_f32_bf16 v41, v32, v32, 0")
    for k in range(1, 4): a(f"v_dot2_f32_bf16 v40, v{32+k}, s{sM+2}, v40\nv_dot2_f32_bf16 v41, v{32+k}, v{32+k}, v41")
    a(f"s_mov_b32 s{sM}, 0xff\ns_mov_b32 s{sM+1}, 0\ns_mov_b32 s{sDG+1}, 0\ns_waitcnt lgkmcnt(0)")
    adds = capture(lambda: a(f"v_pk_add_f32 {d(100)}, {d(100)}, {d(102)}\nv_pk_add_f32 {d(104)}, {d(104)}, {d(106)}\nv_pk_add_f32 {d(100)}, {d(100)}, {d(104)}\nv_add_f32 v100, v100, v101"))
    for c in (Q1, Q2, HM, RM):
        dpp("v_add_f32", 40, 40, 40, c); dpp("v_add_f32", 41, 41, 41, c); a.lines.append(adds.pop(0))
    swapred("v_add_f32", (40, 41), (42, 43), 16)
    swapred("v_add_f32", (40, 41), (42, 43), 32)
    ln_stats(40, 41)
    a("v_mul_f32 v40, v40, v100")
    tdn = capture(lambda: transpose(192, 128))
    if not cfg.dn_late:
        a("s_waitcnt vmcnt(0)"); a.lines.extend(tdn); tdn = []
    for k in range(4): a(f"v_cndmask_b32 v{44+k}, 0, v{44+k}, s[{sM}:{sM+1}]")
    stamp("ln2")
    if cfg.prio: a("s_setprio 1")
    a("s_barrier")
    stamp("b13")
    for p in range(8): a(f"ds_read_b32 v{32+p}, v21 offset:{L_GP+256*p}")
    if tdn: a("s_waitcnt vmcnt(0)"); a.lines.extend(tdn[:14])
    a("s_waitcnt lgkmcnt(4)")
    a(f"v_pk_add_f32 {d(32)}, {d(32)}, {d(34)}")
    a("s_waitcnt lgkmcnt(0)")
    a(f"v_pk_add_f32 {d(36)}, {d(36)}, {d(38)}\nv_pk_add_f32 {d(32)}, {d(32)}, {d(36)}\nv_add_f32 v24, v32, v33\nv_fma_f32 v24, v24, v41, v40")
    a("v_mov_b32 v25, v24\nv_permlane32_swap_b32 v24, v25")
    a(f"v_mul_f32 v26, v24, v24\nv_mul_f32 v25, v24, v25\nv_fmamk_f32 v26, v26, {f2u(k1*0.044715)}, v48\nv_mul_f32 v26, v26, v24")
    a("v_exp_f32 v26, v26\nv_add_f32 v26, 1.0, v26\nv_rcp_f32 v26, v26\nv_mul_f32 v26, v26, v25\nv_cvt_pk_bf16_f32 v26, v26, v26")
    a(f"ds_write_b16 v22, v26\nds_read_b128 {q(32)}, v23")
    a.lines.extend(tdn[14:])
    a("s_waitcnt lgkmcnt(0)")
    for i in range(8): mfma(64+4*i, 32, 128+4*i, "0")
    a("s_mov_b64 exec, 0xffff")
    for k in range(4): a(f"v_cvt_pk_bf16_f32 v{8+k}, v{64+8*k}, v{68+8*k}")
    a(f"buffer_store_dwordx4 {q(8)}, v7, {srd(S_WS)}, s{sK3} offen sc1")
    a("s_mov_b64 exec, -1")
    stamp("h5pub")
    a(f"s_cmp_ge_u32 s{sFS}, 8\ns_cbranch_scc1 L_fin")
    a(f"s_cmp_lg_u32 s{sW}, 0\ns_cbranch_scc1 L_fin")
    a("s_waitcnt vmcnt(0)")
    stamp("h5drain")
    a.label("L_h5")
    for t in range(7):
        a(f"s_add_u32 s{sT1}, s{sK2}, {t*8192}")
        a(f"buffer_load_dwordx4 {q(64+4*t)}, v16, {srd(S_WS)}, s{sT1} offen sc1")
    mfma(8, 28, 44, "0")
    for t in range(7):
        a(f"s_waitcnt vmcnt({6-t})")
        mfma(8, 28, 64+4*t, 8)
    for k in range(4): dpp("v_add_f32", 8+k, 8+k, 8+k, "row_ror:8")
    a(f"v_cmp_u_f32 vcc, v8, v9\nv_cmp_u_f32 s[{sEX}:{sEX+1}], v10, v11")
    a("v_cvt_pk_bf16_f32 v24, v8, v9\nv_cvt_pk_bf16_f32 v25, v10, v11")
    a(f"s_or_b64 vcc, vcc, s[{sEX}:{sEX+1}]\ns_cbranch_vccz L_h5ok")
    a(f"s_sleep {cfg.rsleep}")
    a(f"s_add_u32 s{sDG+1}, s{sDG+1}, 1\ns_cmp_lt_u32 s{sDG+1}, {SPIN}\ns_cbranch_scc1 L_h5")
    fail(5)
    a.label("L_h5ok")
    a("s_mov_b32 exec_lo, 0x00ff00ff\ns_mov_b32 exec_hi, 0")
    a(f"buffer_store_dwordx2 {d(24)}, v18, {srd(S_OUT)}, s{sK1} offen")
    a("s_cmp_lg_u32 s2, 0\ns_cbranch_scc1 L_fin")
    a("s_mov_b64 exec, 1")
    a(f"v_mov_b32 v4, s{sEP}\nv_mov_b32 v5, 0\nbuffer_store_dword v4, v5, {srd(S_WS)}, 0 offen sc1")

    a.label("L_fin")
    if cfg.echo:
        stamp("end")
        a(f"s_cmp_lg_u32 s2, 0\ns_cbranch_scc1 L_end\ns_cmp_lg_u32 s{sW}, {cfg.echo_w}\ns_cbranch_scc1 L_end")
        a("s_memrealtime s[90:91]\ns_waitcnt lgkmcnt(0)")
        a(f"s_sub_u32 s92, s{sST+2}, s{sST}\ns_lshl_b32 s92, s92, 1\ns_min_u32 s92, s92, 20000")
        a.label("L_echo")
        a("s_memrealtime s[94:95]\ns_waitcnt lgkmcnt(0)\ns_sub_u32 s94, s94, s90\ns_cmp_lt_u32 s94, s92\ns_cbranch_scc1 L_echo")
    elif cfg.stamps:
        stamp("end")
        a("s_mov_b64 exec, -1\ns_waitcnt lgkmcnt(0)")
        for k in range(8): a(f"v_writelane_b32 v4, s{sST+2*k}, {k}")
        a(f"v_writelane_b32 v4, s{sCNT}, 10\nv_writelane_b32 v4, s{sDG}, 11\nv_writelane_b32 v4, s{sDG+1}, 12")
        a(f"s_lshl_b32 s{sT0}, s2, 3\ns_add_u32 s{sT0}, s{sT0}, s{sW}\ns_lshl_b32 s{sT0}, s{sT0}, 6\ns_add_u32 s{sT0}, s{sT0}, {WS_STAMP}")
        a(f"v_lshlrev_b32 v5, 2, v{vL}\ns_mov_b64 exec, 0xffff")
        a(f"buffer_store_dword v4, v5, {srd(S_WS)}, s{sT0} offen")
    a.label("L_end")
    a("s_endpgm")
    a.label("L_codeend")
    lines, added = hz.pad(a.lines)
    hdr = open("sequential_preLN__compressed_kv_cla__geglu_ffn__decode.s.ref").read().split("; Override launch")[0]
    s = hdr + f"; @launch grid=(256,1,1) block=(512,1,1) lds={LDS_BYTES}\n" + TARGET + "\n".join(lines) + "\n" + kernel_desc(KNAME, 256)
    return s, added

if __name__ == "__main__":
    out = sys.argv[1] if len(sys.argv) > 1 else "k.s"
    class C(Cfg): pass
    for kv in sys.argv[2:]:
        k, v = kv.split("=", 1)
        setattr(C, k, eval(v))
    s, added = gen(C)
    open(out, "w").write(s)
    print("written", out, "nops added", added, "lines", s.count("\n"), "lds", LDS_BYTES)
```
